```python
import torch

def _softmax(x, axis=-1):
    return torch.softmax(x, dim=axis)
def _gelu(x):
    return torch.nn.functional.gelu(x, approximate="tanh")
def _silu(x):
    return torch.nn.functional.silu(x)
def _sigmoid(x):
    return torch.sigmoid(x)
def _layernorm(x, axis=-1, eps=1e-5):
    m = x.mean(dim=axis, keepdim=True)
    v = x.var(dim=axis, keepdim=True, unbiased=False)
    return (x - m) / torch.sqrt(v + eps)
def _scatter_add(tgt, idx, src, axis=0):
    return tgt.clone().index_add_(axis, idx, src)
def _segment_sum(src, seg, n):
    out = torch.zeros((n,) + src.shape[1:], dtype=src.dtype)
    return out.index_add_(0, seg, src)
def _pad(x, pw):
    flat = tuple(v for pair in reversed(pw) for v in pair)
    return torch.nn.functional.pad(x, flat)

kernel_name = 'sequential_preLN__sliding_block__swiglu_ffn__prompt'

def setup_inputs():

    _w = (lambda a: (lambda t: t.to(torch.bfloat16) if t.is_floating_point() else t)(torch.as_tensor(a)))
    def _A_setup():
        B, S, D = 1, 2048, 448
        return {
            "x": _w((lambda *s: torch.randn(*s, dtype=torch.bfloat16) * 0.05)(B, S, D)),
            "wqkv": _w((lambda *s: torch.randn(*s, dtype=torch.bfloat16) * 0.05)(D, 3 * D)),
            "wo": _w((lambda *s: torch.randn(*s, dtype=torch.bfloat16) * 0.05)(D, D)),
        }
    _A_in = _A_setup()

    def _B_setup():
        B, S, D, F = 1, 2048, 448, 1792
        return {
            "x": _w((lambda *s: torch.randn(*s, dtype=torch.bfloat16) * 0.05)(B, S, D)),
            "w_gate": _w((lambda *s: torch.randn(*s, dtype=torch.bfloat16) * 0.05)(D, F)),
            "w_up": _w((lambda *s: torch.randn(*s, dtype=torch.bfloat16) * 0.05)(D, F)),
            "w_down": _w((lambda *s: torch.randn(*s, dtype=torch.bfloat16) * 0.05)(F, D)),
        }
    _B_in = _B_setup()

    return {
        "A_x": _A_in["x"],
        "A_wqkv": _A_in["wqkv"],
        "A_wo": _A_in["wo"],
        "B_x": _B_in["x"],
        "B_w_gate": _B_in["w_gate"],
        "B_w_up": _B_in["w_up"],
        "B_w_down": _B_in["w_down"],
    }

def reference(A_x, A_wqkv, A_wo, B_x, B_w_gate, B_w_up, B_w_down):
    def _A_ref(x, wqkv, wo):
        B, S, D = x.shape
        H = 16; Dh = D // H; W = 256
        qkv = (lambda x, *d: x.permute(*d))((x @ wqkv).reshape(B, S, 3, H, Dh), 2, 0, 3, 1, 4)
        q, k, v = qkv[0], qkv[1], qkv[2]
        scores = torch.einsum("bhqd,bhkd->bhqk", q, k) * (Dh ** -0.5)
        idx = torch.arange(S)
        mask = (idx[:, None] - idx[None, :] >= 0) & (idx[:, None] - idx[None, :] < W)
        scores = torch.where(mask[None, None], scores, -1e9)
        p = _softmax(scores, axis=-1)
        o = torch.einsum("bhqk,bhkd->bhqd", p, v)
        return (lambda x, *d: x.permute(*d))(o, 0, 2, 1, 3).reshape(B, S, D) @ wo

    def _B_ref(x, w_gate, w_up, w_down):
        g = _silu(x @ w_gate)
        u = x @ w_up
        return (g * u) @ w_down

    x = A_x
    h = x + _A_ref(_layernorm(x, axis=-1), A_wqkv, A_wo)
    h2 = h + _B_ref(_layernorm(h, axis=-1), B_w_gate, B_w_up, B_w_down)
    return h2
```

```python
import re

TRANS = ("v_exp_f32", "v_log_f32", "v_rcp_f32", "v_rsq_f32", "v_sqrt_f32", "v_sin_f32", "v_cos_f32")

_reg_re = re.compile(r"^(-|abs\()?([vsa])(\d+)\)?$")
_rng_re = re.compile(r"^(-)?([vsa])\[(\d+):(\d+)\]$")


def regs_of(tok):
    tok = tok.strip()
    m = _reg_re.match(tok)
    if m:
        return [(m.group(2), int(m.group(3)))]
    m = _rng_re.match(tok)
    if m:
        return [(m.group(2), i) for i in range(int(m.group(3)), int(m.group(4)) + 1)]
    if tok in ("vcc", "vcc_lo", "vcc_hi"):
        return [("vcc", 0)]
    if tok == "m0":
        return [("m0", 0)]
    if tok in ("exec", "exec_lo", "exec_hi"):
        return [("exec", 0)]
    return []


class Ins:
    __slots__ = ("text", "mn", "dst", "src", "kind", "srcc", "srcab", "states", "data")

    def __init__(self, text):
        self.text = text
        t = text.split(";")[0].strip()
        t = re.sub(r"\b(op_sel|op_sel_hi|neg_lo|neg_hi):\[[^\]]*\]", "", t)
        t = re.sub(r"hwreg\([^)]*\)", "hwreg", t).strip()
        parts = t.split(None, 1)
        self.mn = mn = parts[0]
        ops = []
        mods = ""
        if len(parts) > 1:
            raw = [x.strip() for x in parts[1].split(",")]
            last = raw[-1].split()
            raw[-1] = last[0] if last else ""
            mods = " ".join(last[1:])
            ops = raw
        self.dst = []
        self.src = []
        self.srcc = []
        self.srcab = []
        self.data = []
        self.states = 1
        R = regs_of
        if mn == "s_nop":
            self.kind = "nop"
            self.states = int(ops[0], 0) + 1
        elif mn.startswith("v_mfma"):
            self.kind = "mfma"
            self.dst = R(ops[0])
            self.srcab = R(ops[1]) + R(ops[2])
            self.srcc = R(ops[3])
            self.src = self.srcab + self.srcc
        elif mn.startswith("v_cmp"):
            self.kind = "valu"
            self.dst = R(ops[0])
            self.src = [r for o in ops[1:] for r in R(o)]
        elif mn.startswith("v_permlane"):
            self.kind = "permlane"
            self.dst = R(ops[0]) + R(ops[1])
            self.src = R(ops[0]) + R(ops[1])
        elif mn in ("v_readfirstlane_b32", "v_readlane_b32"):
            self.kind = "readlane"
            self.dst = R(ops[0])
            self.src = [r for o in ops[1:] for r in R(o)]
        elif mn.startswith("v_"):
            self.kind = "trans" if mn.replace("_e32", "").replace("_e64", "") in TRANS else "valu"
            self.dst = R(ops[0])
            self.src = [r for o in ops[1:] for r in R(o)]
            if mn.startswith(("v_fmac", "v_dot2c", "v_pk_fmac")):
                self.src += self.dst
            if "dpp" in mods or "row_" in mods or "quad_perm" in mods:
                self.kind = "dpp"
        elif mn.startswith("buffer_load") or mn.startswith("global_load"):
            self.kind = "vmem"
            if " lds" in (" " + mods):
                self.kind = "dma"
                self.src = [r for o in ops for r in R(o)] + [("m0", 0)]
            else:
                self.dst = R(ops[0])
                self.src = [r for o in ops[1:] for r in R(o)]
        elif mn.startswith("buffer_store") or mn.startswith("global_store") or mn.startswith("buffer_atomic"):
            self.kind = "vmem"
            self.src = [r for o in ops for r in R(o)]
            if mn.endswith(("x4", "x3")):
                self.data = R(ops[0]) if mn.startswith("buffer") else R(ops[1])
        elif mn.startswith("ds_read") or mn.startswith("ds_bpermute") or mn.startswith("ds_swizzle"):
            self.kind = "ds"
            self.dst = R(ops[0])
            self.src = [r for o in ops[1:] for r in R(o)]
        elif mn.startswith("ds_"):
            self.kind = "ds"
            self.src = [r for o in ops for r in R(o)]
        elif mn.startswith("s_"):
            self.kind = "salu"
            if mn.startswith(("s_cmp", "s_cbranch", "s_branch", "s_waitcnt", "s_barrier", "s_endpgm", "s_setprio", "s_sleep")):
                self.src = [r for o in ops for r in R(o)]
            else:
                self.dst = R(ops[0]) if ops else []
                self.src = [r for o in ops[1:] for r in R(o)]
        else:
            raise ValueError("unknown instruction: " + text)


VALU_KINDS = ("valu", "trans", "permlane", "readlane", "dpp")


class Asm:
    def __init__(self):
        self.lines = []
        self.hist = []
        self.pos = 0
        self.pending = {}
        self.nlabel = 0
        self.nops_inserted = 0

    def raw(self, s):
        self.lines.append(s)

    def comment(self, s):
        self.lines.append("; " + s)

    def label(self, name=None):
        if name is None:
            self.nlabel += 1
            name = "L%d" % self.nlabel
        return name

    def place(self, name):
        self.lines.append(name + ":")
        for (h, p) in self.pending.pop(name, []):
            for (ins, ip) in h:
                d = p - ip
                self.hist.append((ins, self.pos - d))
        self.hist.sort(key=lambda e: e[1])

    def _need(self, c):
        need = 0
        csrc = set(c.src)
        cdst = set(c.dst)
        cval = c.kind in VALU_KINDS
        for (p, ip) in self.hist:
            dist = self.pos - ip - p.states
            req = 0
            pd = set(p.dst)
            pval = p.kind in VALU_KINDS
            if pval:
                vd = {r for r in pd if r[0] == "v"}
                sd = {r for r in pd if r[0] in ("s", "vcc")}
                if c.kind == "mfma" and vd & csrc:
                    req = max(req, 2)
                if c.kind == "readlane" and vd & csrc:
                    req = max(req, 1)
                if c.kind in ("permlane", "dpp") and vd & csrc:
                    req = max(req, 2)
                if p.kind == "trans" and cval and c.kind != "trans" and vd & (csrc | cdst):
                    req = max(req, 1)
                if p.kind == "trans" and c.kind == "trans" and vd & csrc:
                    req = max(req, 1)
                if sd & csrc:
                    if cval:
                        req = max(req, 2)
                    if c.kind in ("vmem", "dma"):
                        req = max(req, 5)
                    if c.kind == "salu":
                        req = max(req, 1)
            if p.kind == "mfma":
                big = "32x32" in p.mn
                n = 12 if big else 8
                if c.kind == "mfma":
                    if pd & set(c.srcab):
                        req = max(req, n)
                    if pd & set(c.srcc) and c.srcc != p.dst:
                        req = max(req, n - 2)
                    if pd & cdst and not (c.srcc == p.dst and c.dst == p.dst):
                        req = max(req, n)
                else:
                    if pd & (csrc | cdst):
                        req = max(req, n)
                    if cval and set(p.srcc) & cdst:
                        req = max(req, 7 if big else 3)
            if p.data and (set(p.data) & cdst):
                req = max(req, 2 if cval else 1)
            if p.kind == "salu" and ("m0", 0) in pd and c.kind == "dma":
                req = max(req, 1)
            need = max(need, req - dist)
        return need

    def __call__(self, text):
        for t in text.split("\n"):
            t = t.strip()
            if not t:
                continue
            if t.startswith(";"):
                self.lines.append(t)
                continue
            self._emit(t)

    def _emit(self, t):
        c = Ins(t)
        need = self._need(c)
        while need > 0:
            n = min(need, 16)
            self.lines.append("s_nop %d" % (n - 1))
            self.pos += n
            self.nops_inserted += 1
            need -= n
        self.lines.append(t)
        self.hist.append((c, self.pos))
        self.pos += c.states
        self.hist = [(i, ip) for (i, ip) in self.hist if self.pos - ip < 24]
        if c.mn.startswith(("s_cbranch", "s_branch")):
            tgt = t.split()[1]
            self.pending.setdefault(tgt, []).append((list(self.hist), self.pos))
            if c.mn == "s_branch":
                self.hist = []

    def text(self):
        return "\n".join(self.lines) + "\n"


def v(n, cnt=1):
    return "v%d" % n if cnt == 1 else "v[%d:%d]" % (n, n + cnt - 1)


def s(n, cnt=1):
    return "s%d" % n if cnt == 1 else "s[%d:%d]" % (n, n + cnt - 1)
```

```python
import sys, math, struct
from asmlib import Asm, v, s

NAME = "sequential_preLN__sliding_block__swiglu_ffn__prompt"
STAMPS = "--stamps" in sys.argv

FLAG = 0x000000
FL_KV, FL_O, FL_H, FL_ACT = 0, 0x8000, 0x10000, 0x18000
FL_RP = 0x20000
STAMP_OFF = 0x40000
WOF = 0x100000
WGUF = 0x200000
WDF = 0x600000
KVB = 0x800000
OFB = 0xC00000
HFB = 0xE00000
ACTB = 0x1000000
WS_SIZE = 0x1700000
XST = 86016
MISC = XST + 65536
TBL = MISC
CSB = MISC + 1024
LDS_BYTES = MISC + 2048
OLDS = 114688
VREG = 24576

def f32(x):
    return "0x%08x" % struct.unpack("<I", struct.pack("<f", x))[0]

A = Asm()

class Cnt:
    def __init__(self, name, mx):
        self.name, self.mx, self.n, self.tags, self.done = name, mx, 0, {}, -1
    def issue(self, tag=None):
        if tag is not None:
            self.tags[tag] = self.n
        self.n += 1
    def wait(self, tag):
        i = self.tags[tag]
        if i <= self.done:
            return
        k = min(self.n - 1 - i, self.mx)
        A("s_waitcnt %s(%d)" % (self.name, k))
        self.done = self.n - 1 - k
    def wait_all(self):
        A("s_waitcnt %s(0)" % self.name)
        self.done = self.n - 1

VM = Cnt("vmcnt", 63)
LG = Cnt("lgkmcnt", 15)

SX, SWQ, SOUT, SDBG, SWS, SSRC, SCODE = 36, 40, 44, 48, 52, 56, 60
sW, sRB, sJ, sSLOT, sNLO, sNHI = 64, 65, 66, 67, 68, 69
sRDST, sRSTR, sISWO, sHAS, sRPITCH, sRSRC = 70, 71, 72, 73, 74, 75
T0, T1, T2, T3, T4, T5 = 4, 5, 6, 7, 8, 9
sSPIN = 10
M1, M2, M3, MD = 76, 78, 80, 82
sSTAMP = 84
nstamp = [0]

vL, vL16, vL16B = 0, 1, 2
ONES = 16
XRES = 20
NON = 24
PT = 26
QF = 28

def stamp():
    if not STAMPS:
        return
    i = nstamp[0]; nstamp[0] += 1
    assert i < 16
    A("s_memrealtime s[12:13]")
    A("s_waitcnt lgkmcnt(0)")
    LG.done = LG.n - 1
    A("s_mov_b32 s%d, s12" % (sSTAMP + i))

def mfma(d, a, b, c=None):
    cs = "0" if c is None else v(c, 4)
    A("v_mfma_f32_16x16x32_bf16 %s, %s, %s, %s" % (v(d, 4), v(a, 4), v(b, 4), cs))

def srd(r, lo, size):
    A("s_mov_b32 s%d, s%d" % (r, lo))
    A("s_mov_b32 s%d, s%d" % (r + 1, lo + 1))
    A("s_mov_b32 s%d, 0x%x" % (r + 2, size))
    A("s_mov_b32 s%d, 0x20000" % (r + 3))

def set_exec(lo, hi):
    A("s_mov_b32 exec_lo, 0x%x" % lo)
    A("s_mov_b32 exec_hi, 0x%x" % hi)

def exec_all():
    A("s_mov_b64 exec, -1")

def barrier():
    A("s_barrier")

def if_wave7():
    L = A.label()
    A("s_cmp_lg_u32 s%d, 7" % sW)
    A("s_cbranch_scc1 %s" % L)
    return L

def flag_store(base):
    A("s_lshl_b32 s%d, s%d, 7" % (T0, sSLOT))
    A("s_add_u32 s%d, s%d, 0x%x" % (T0, T0, base))
    A("s_mov_b64 exec, 1")
    A("buffer_store_dwordx2 %s, %s, %s, s%d offen sc1" % (v(NON, 2), v(vL16), s(SWS, 4), T0))
    exec_all()

def poll_team(base):
    A("s_lshl_b32 s%d, s%d, 11" % (T0, sRB))
    A("s_add_u32 s%d, s%d, 0x%x" % (T0, T0, base))
    A("v_lshlrev_b32 v3, 7, v%d" % vL)
    A("s_mov_b64 exec, 0xffff")
    poll_loop("v3", T0)
    exec_all()

def poll_loop(vaddr, soff):
    Lp = A.label(); Ld = A.label()
    A("s_mov_b32 s%d, 0" % sSPIN)
    A.place(Lp)
    A("buffer_load_dwordx2 %s, %s, %s, s%d offen sc1" % (v(PT, 2), vaddr, s(SWS, 4), soff))
    A("s_add_u32 s%d, s%d, 1" % (sSPIN, sSPIN))
    A("s_cmp_gt_u32 s%d, 0x40000" % sSPIN)
    A("s_waitcnt vmcnt(0)")
    A("s_cbranch_scc1 %s" % Ld)
    A("v_cmp_ne_u64 vcc, %s, %s" % (v(PT, 2), v(NON, 2)))
    A("s_cbranch_vccnz %s" % Lp)
    A.place(Ld)

A.raw("; @launch grid=(256,1,1) block=(512,1,1) lds=%d" % LDS_BYTES)
A.raw('.amdgcn_target "amdgcn-amd-amdhsa--gfx950"')
A.raw(".text")
A.raw(".globl %s_kernel\n.p2align 8\n.type %s_kernel,@function\n%s_kernel:" % (NAME, NAME, NAME))
A("s_cmp_ge_u32 s2, 256")
A("s_cbranch_scc1 L_end")
A("s_load_dwordx16 s[16:31], s[0:1], 0")
A("s_load_dwordx4 s[32:35], s[0:1], 64")
A("s_getpc_b64 s[60:61]")
A.raw("L_pc:")
A("s_mov_b32 s62, L_code_end - L_pc")
A("s_mov_b32 s63, 0x20000")
A("v_lshrrev_b32 v3, 6, v0")
A("v_and_b32 v%d, 63, v0" % vL)
A("v_readfirstlane_b32 s%d, v3" % sW)
A("v_lshlrev_b32 v%d, 4, v%d" % (vL16, vL))
A("v_add_u32 v%d, 57344, v%d" % (vL16B, vL16))
A("s_and_b32 s%d, s2, 7" % T0)
A("s_lshr_b32 s%d, s2, 3" % T1)
A("s_lshr_b32 s%d, s%d, 4" % (T2, T1))
A("s_lshl_b32 s%d, s%d, 1" % (sRB, T0))
A("s_add_u32 s%d, s%d, s%d" % (sRB, sRB, T2))
A("s_and_b32 s%d, s%d, 15" % (sJ, T1))
A("s_lshl_b32 s%d, s%d, 4" % (sSLOT, sRB))
A("s_add_u32 s%d, s%d, s%d" % (sSLOT, sSLOT, sJ))
A("s_and_b32 s%d, s%d, 3" % (T2, T1))
A("s_lshl_b32 s%d, s%d, 3" % (T2, T2))
A("s_add_u32 s%d, s%d, s%d" % (T2, T2, sW))
A("s_lshl_b32 s%d, s%d, 10" % (T2, T2))
A("buffer_load_dwordx4 v[172:175], v%d, s[60:63], s%d offen" % (vL16, T2)); VM.issue()
A("v_lshrrev_b32 v12, 3, v%d" % vL)
A("v_and_b32 v13, 7, v%d" % vL)
A("v_lshrrev_b32 v14, 4, v%d" % vL)
A("v_and_b32 v15, 15, v%d" % vL)
A("v_xor_b32 v3, v13, v14")
A("v_mul_u32_u24 v4, 896, v12")
A("v_lshl_add_u32 v3, v3, 4, v4")
A("v_xor_b32 v4, v13, v14")
A("v_xor_b32 v4, 4, v4")
A("v_mul_u32_u24 v5, 896, v12")
A("v_add_u32 v5, %d, v5" % (8 * 896))
A("v_lshl_add_u32 v4, v4, 4, v5")
A("v_lshrrev_b32 v5, 2, v%d" % vL)
A("v_mul_u32_u24 v7, 2688, v5")
A("v_lshrrev_b32 v5, 5, v%d" % vL)
A("v_lshlrev_b32 v5, 1, v5")
A("v_and_b32 v6, 3, v%d" % vL)
A("v_xor_b32 v5, v5, v6")
A("v_lshl_add_u32 v7, v5, 4, v7")
A("s_waitcnt lgkmcnt(0)")
stamp()
srd(SX, 16, 2048 * 896)
srd(SWQ, 18, 448 * 2688)
srd(SWS, 34, WS_SIZE)
srd(SDBG, 32, 256)
srd(SOUT, 30, 2048 * 896)
Ln = A.label()
A("s_cmp_lg_u32 s2, 0")
A("s_cbranch_scc1 %s" % Ln)
A("s_cmp_lg_u32 s%d, 7" % sW)
A("s_cbranch_scc1 %s" % Ln)
A("s_memrealtime s[12:13]")
A("s_waitcnt lgkmcnt(0)")
A("s_or_b32 s13, s13, 0x80000000")
A("v_mov_b32 v%d, s12" % NON)
A("v_mov_b32 v%d, s13" % (NON + 1))
A("s_mov_b64 exec, 1")
A("buffer_store_dwordx2 %s, v%d, %s, 0 offen sc1" % (v(NON, 2), vL16, s(SDBG, 4)))
exec_all()
A.place(Ln)

sXO, sXL, sWH = 11, 14, 15
A("s_lshl_b32 s%d, s%d, 7" % (T0, sRB))
A("s_lshl_b32 s%d, s%d, 4" % (T1, sW))
A("s_add_u32 s%d, s%d, s%d" % (T0, T0, T1))
A("s_mul_i32 s%d, s%d, 896" % (sXO, T0))
A("s_lshl_b32 s%d, s%d, 13" % (sXL, sW))
A("s_add_u32 s%d, s%d, %d" % (sXL, sXL, XST))
A("s_mul_i32 s%d, s%d, 56" % (sWH, sJ))
XS = 32
def w_dma(i):
    A("s_add_u32 s%d, s%d, %d" % (T0, sW, 8 * i))
    if 8 * i + 7 > 83:
        A("s_min_u32 s%d, s%d, 83" % (T0, T0))
    A("s_mul_i32 s%d, s%d, 43" % (T1, T0))
    A("s_lshr_b32 s%d, s%d, 7" % (T1, T1))
    A("s_lshl_b32 m0, s%d, 10" % T0)
    A("s_mul_i32 s%d, s%d, %d" % (T2, T1, 43008 - 3 * 896))
    A("s_mul_i32 s%d, s%d, 896" % (T3, T0))
    A("s_add_u32 s%d, s%d, s%d" % (T2, T2, T3))
    A("s_add_u32 s%d, s%d, s%d" % (T2, T2, sWH))
    A("buffer_load_dwordx4 v7, %s, s%d offen lds" % (s(SWQ, 4), T2)); VM.issue()
def x_load(c):
    A("s_add_u32 s%d, s%d, %d" % (T0, sXO, c * 128))
    for hh in range(2):
        if c < 4:
            A("s_add_u32 m0, s%d, %d" % (sXL, c * 2048 + hh * 1024))
            A("buffer_load_dwordx4 v%d, %s, s%d offen lds" % (3 + hh, s(SX, 4), T0))
        else:
            A("buffer_load_dwordx4 %s, v%d, %s, s%d offen" % (v(XS + (c - 4) * 8 + hh * 4, 4), 3 + hh, s(SX, 4), T0))
        VM.issue(("x", c) if hh == 1 else None)
wsched = [[0, 1], [2], [3, 4], [5], [6, 7], [8], [9, 10]]
for c in range(7):
    for i in wsched[c]:
        w_dma(i)
    x_load(c)

A("s_lshl_b32 s%d, s%d, 8" % (T0, sW))
A("s_add_u32 s%d, s%d, s2" % (T0, T0))
A("s_cmp_lt_u32 s%d, 1288" % T0)
A("s_cselect_b32 s%d, 1, 0" % sHAS)
A("s_min_u32 s%d, s%d, 1287" % (T0, T0))
Lgu = A.label(); Lwd = A.label(); Lrp_done = A.label()
A("s_mov_b32 s%d, 0" % sISWO)
A("s_mov_b32 s%d, 0x20000" % (SSRC + 3))
A("s_cmp_lt_u32 s%d, 784" % T0)
A("s_cbranch_scc1 %s" % Lgu)
A("s_cmp_lt_u32 s%d, 1176" % T0)
A("s_cbranch_scc1 %s" % Lwd)
A("s_sub_u32 s%d, s%d, 1176" % (T0, T0))
A("s_mul_i32 s%d, s%d, 9363" % (T1, T0))
A("s_lshr_b32 s%d, s%d, 16" % (T1, T1))
A("s_mul_i32 s%d, s%d, 7" % (T2, T1))
A("s_sub_u32 s%d, s%d, s%d" % (T2, T0, T2))
A("s_mov_b32 s%d, s20\ns_mov_b32 s%d, s21\ns_mov_b32 s%d, %d" % (SSRC, SSRC + 1, SSRC + 2, 448 * 896))
A("s_mov_b32 s%d, 896" % sRPITCH)
A("s_mul_i32 s%d, s%d, %d" % (sRSRC, T1, 28 * 896))
A("s_lshl_b32 s%d, s%d, 7" % (T3, T2))
A("s_add_u32 s%d, s%d, s%d" % (sRSRC, sRSRC, T3))
A("s_lshl_b32 s%d, s%d, 16" % (sRDST, T2))
A("s_lshl_b32 s%d, s%d, 10" % (T3, T1))
A("s_add_u32 s%d, s%d, s%d" % (sRDST, sRDST, T3))
A("s_add_u32 s%d, s%d, 0x%x" % (sRDST, sRDST, WOF))
A("s_mov_b32 s%d, 16384" % sRSTR)
A("s_mov_b32 s%d, 1" % sISWO)
A("s_branch %s" % Lrp_done)
A.place(Lwd)
A("s_sub_u32 s%d, s%d, 784" % (T0, T0))
A("s_mul_i32 s%d, s%d, 9363" % (T1, T0))
A("s_lshr_b32 s%d, s%d, 16" % (T1, T1))
A("s_mul_i32 s%d, s%d, 7" % (T2, T1))
A("s_sub_u32 s%d, s%d, s%d" % (T2, T0, T2))
A("s_mov_b32 s%d, s28\ns_mov_b32 s%d, s29\ns_mov_b32 s%d, %d" % (SSRC, SSRC + 1, SSRC + 2, 1792 * 896))
A("s_mov_b32 s%d, 896" % sRPITCH)
A("s_mul_i32 s%d, s%d, %d" % (sRSRC, T1, 32 * 896))
A("s_lshl_b32 s%d, s%d, 7" % (T3, T2))
A("s_add_u32 s%d, s%d, s%d" % (sRSRC, sRSRC, T3))
A("s_mul_i32 s%d, s%d, %d" % (sRDST, T2, 4 * 57344))
A("s_lshl_b32 s%d, s%d, 10" % (T3, T1))
A("s_add_u32 s%d, s%d, s%d" % (sRDST, sRDST, T3))
A("s_add_u32 s%d, s%d, 0x%x" % (sRDST, sRDST, WDF))
A("s_mov_b32 s%d, 57344" % sRSTR)
A("s_branch %s" % Lrp_done)
A.place(Lgu)
A("s_cmp_ge_u32 s%d, 392" % T0)
A("s_cselect_b32 s%d, s26, s24" % SSRC)
A("s_cselect_b32 s%d, s27, s25" % (SSRC + 1))
A("s_cselect_b32 s%d, 392, 0" % T4)
A("s_cselect_b32 s%d, 1024, 0" % T5)
A("s_mov_b32 s%d, %d" % (SSRC + 2, 448 * 3584))
A("s_sub_u32 s%d, s%d, s%d" % (T0, T0, T4))
A("s_mul_i32 s%d, s%d, 2341" % (T1, T0))
A("s_lshr_b32 s%d, s%d, 16" % (T1, T1))
A("s_mul_i32 s%d, s%d, 28" % (T2, T1))
A("s_sub_u32 s%d, s%d, s%d" % (T2, T0, T2))
A("s_mov_b32 s%d, 3584" % sRPITCH)
A("s_mul_i32 s%d, s%d, %d" % (sRSRC, T1, 32 * 3584))
A("s_lshl_b32 s%d, s%d, 7" % (T3, T2))
A("s_add_u32 s%d, s%d, s%d" % (sRSRC, sRSRC, T3))
A("s_mul_i32 s%d, s%d, %d" % (sRDST, T2, 4 * 28672))
A("s_lshl_b32 s%d, s%d, 11" % (T3, T1))
A("s_add_u32 s%d, s%d, s%d" % (sRDST, sRDST, T3))
A("s_add_u32 s%d, s%d, s%d" % (sRDST, sRDST, T5))
A("s_add_u32 s%d, s%d, 0x%x" % (sRDST, sRDST, WGUF))
A("s_mov_b32 s%d, 28672" % sRSTR)
A.place(Lrp_done)
RS = 56
A("v_mul_lo_u32 v11, v12, s%d" % sRPITCH)
A("v_lshl_add_u32 v11, v13, 4, v11")
A("s_lshl_b32 s%d, s%d, 3" % (T1, sRPITCH))
A("s_mov_b32 s%d, s%d" % (T0, sRSRC))
for t in range(4):
    A("buffer_load_dwordx4 %s, v11, %s, s%d offen" % (v(RS + 4 * t, 4), s(SSRC, 4), T0)); VM.issue()
    if t < 3:
        A("s_add_u32 s%d, s%d, s%d" % (T0, T0, T1))
A("v_mul_u32_u24 v11, 896, v15")
A("v_lshl_add_u32 v11, v14, 3, v11")
A("s_lshr_b32 s%d, s%d, 2" % (T0, sJ))
A("s_lshl_b32 s%d, s%d, 5" % (T0, T0))
A("s_lshl_b32 s%d, s%d, 7" % (T1, sRB))
A("s_add_u32 s%d, s%d, s%d" % (T0, T0, T1))
A("s_mul_i32 s%d, s%d, 896" % (T0, T0))
A("s_and_b32 s%d, s%d, 3" % (T1, sJ))
A("s_mul_i32 s%d, s%d, 224" % (T1, T1))
A("s_add_u32 s%d, s%d, s%d" % (T0, T0, T1))
A("s_lshl_b32 s%d, s%d, 5" % (T1, sW))
A("s_add_u32 s%d, s%d, s%d" % (T0, T0, T1))
A("buffer_load_dwordx2 %s, v11, %s, s%d offen" % (v(XRES, 2), s(SX, 4), T0)); VM.issue()
A("s_add_u32 s%d, s%d, %d" % (T0, T0, 16 * 896))
A("buffer_load_dwordx2 %s, v11, %s, s%d offen" % (v(XRES + 2, 2), s(SX, 4), T0)); VM.issue()

A("v_lshrrev_b32 v5, 1, v15")
A("v_xor_b32 v5, v5, v14")
A("v_lshrrev_b32 v6, 3, v15")
A("v_lshlrev_b32 v6, 10, v6")
A("v_and_b32 v8, 7, v15")
A("v_lshl_add_u32 v6, v8, 7, v6")
A("v_add_u32 v6, s%d, v6" % sXL)
A("v_xor_b32 v8, 4, v5")
A("v_lshl_add_u32 v5, v5, 4, v6")
A("v_lshl_add_u32 v6, v8, 4, v6")
A("v_lshrrev_b32 v8, 1, v14")
A("v_mul_u32_u24 v8, 3072, v8")
A("v_and_b32 v9, 1, v14")
A("v_lshrrev_b32 v10, 2, v15")
A("v_lshl_add_u32 v10, v9, 3, v10")
A("v_lshl_add_u32 v8, v10, 6, v8")
A("v_and_b32 v10, 3, v%d" % vL)
A("v_lshl_add_u32 v8, v10, 3, v8")
A("v_lshl_add_u32 v10, v9, 5, v8")
A("v_xor_b32 v9, 1, v9")
A("v_lshl_add_u32 v9, v9, 5, v8")
A("v_mov_b32 v8, v10")
A("s_cmp_ge_u32 s%d, 6" % sW)
A("s_cselect_b32 s%d, 6, 0" % T0)
A("s_sub_u32 s%d, s%d, s%d" % (T0, sW, T0))
A("s_lshr_b32 s%d, s%d, 1" % (T1, T0))
A("s_lshl_b32 s%d, s%d, 10" % (T1, T1))
A("s_and_b32 s%d, s%d, 1" % (T2, T0))
A("s_cmp_eq_u32 s%d, 1" % T2)
A("s_cselect_b64 s[12:13], -1, 0")
A("v_cndmask_b32 v10, v8, v9, s[12:13]")
A("v_add_u32 v10, s%d, v10" % T1)
sTT = 3
A("s_mov_b32 s%d, s%d" % (sTT, T0))
for i in range(4):
    A("v_mov_b32 v%d, 0x3f803f80" % (ONES + i))
for (r, lo, hi) in ((M1, 0x22222222, 0x22222222), (M2, 0x44444444, 0x44444444), (M3, 0x88888888, 0x88888888), (MD, 0x00F0000F, 0xF0000F00)):
    A("s_mov_b32 s%d, 0x%x\ns_mov_b32 s%d, 0x%x" % (r, lo, r + 1, hi))
A("v_add_u32 v11, s%d, v%d" % (sXL, vL16))

ACC = 72
GR, RSUM, CSA = 96, 100, 104
XF = 108
WF = 116
def p1_reads_x(ks):
    c, e = ks >> 1, ks & 1
    A("ds_read_b128 %s, v%d offset:%d" % (v(XF + 4 * e, 4), 5 + e, (c & 3) * 2048)); LG.issue(("x", ks))
def p1_reads_w(ks, f):
    e = ks & 1
    d = WF + e * 28 + f * 4
    koff = (ks % 7) * 6144
    if f < 6:
        m, t2 = f >> 1, f & 1
        va, off = 8 + t2, koff + m * 1024
    else:
        va, off = 10, koff
    A("ds_read_b64_tr_b16 %s, v%d offset:%d" % (v(d, 2), va, off)); LG.issue()
    A("ds_read_b64_tr_b16 %s, v%d offset:%d" % (v(d + 2, 2), va, off + 256)); LG.issue(("w", ks, f))
def p1_mfma_x(ks):
    e = ks & 1
    xf = XF + 4 * e
    LG.wait(("x", ks))
    mfma(GR, xf, xf, None if ks == 0 else GR)
    mfma(RSUM, ONES, xf, None if ks == 0 else RSUM)
def p1_mfma_w(ks, f):
    e = ks & 1
    xf = XF + 4 * e
    wf = WF + e * 28 + f * 4
    LG.wait(("w", ks, f))
    if f < 4:
        mfma(ACC + 4 * f, wf, xf, None if ks == 0 else ACC + 4 * f)
    elif f < 6:
        mfma(ACC + 4 * f, xf, wf, None if ks == 0 else ACC + 4 * f)
    else:
        mfma(CSA, ONES, wf, None if ks == 0 else CSA)
def bump_w():
    for r in (8, 9, 10):
        A("v_add_u32 v%d, %d, v%d" % (r, 7 * 6144, r))
for c in range(7):
    VM.wait(("x", c))
    if c >= 4:
        for hh in range(2):
            A("ds_write_b128 v11, %s offset:%d" % (v(XS + (c - 4) * 8 + hh * 4, 4), (c - 4) * 2048 + hh * 1024)); LG.issue()
    barrier()
    k0, k1 = 2 * c, 2 * c + 1
    p1_reads_x(k0)
    for f in range(7):
        p1_reads_w(k0, f)
    if k1 == 7:
        bump_w()
    p1_mfma_x(k0)
    p1_reads_x(k1)
    for f in range(7):
        p1_mfma_w(k0, f)
        p1_reads_w(k1, f)
    p1_mfma_x(k1)
    for f in range(7):
        p1_mfma_w(k1, f)
stamp()
A("s_lshl_b32 s%d, s%d, 6" % (T0, sTT))
A("s_add_u32 s%d, s%d, %d" % (T0, T0, CSB))
A("v_lshl_add_u32 v3, v15, 2, s%d" % T0)
A("ds_write_b32 v3, v%d" % CSA); LG.issue()
A("v_cndmask_b32 v4, v%d, v%d, s[%d:%d]" % (GR, GR + 1, M1, M1 + 1))
A("v_cndmask_b32 v4, v4, v%d, s[%d:%d]" % (GR + 2, M2, M2 + 1))
A("v_cndmask_b32 v4, v4, v%d, s[%d:%d]" % (GR + 3, M3, M3 + 1))
def stats(vsq, vsum, vout, t):
    A("v_mul_f32 v%d, %s, v%d" % (t, f32(1.0 / 448), vsum))
    A("v_mul_f32 v%d, %s, v%d" % (vout, f32(1.0 / 448), vsq))
    A("v_fma_f32 v%d, -v%d, v%d, v%d" % (vout, t, t, vout))
    A("v_max_f32 v%d, 0, v%d" % (vout, vout))
    A("v_add_f32 v%d, %s, v%d" % (vout, f32(1e-5), vout))
    A("v_rsq_f32 v%d, v%d" % (vout, vout))
    A("v_mul_f32 v%d, -v%d, v%d" % (vout + 1, t, vout) if False else "v_mul_f32_e64 v%d, -v%d, v%d" % (vout + 1, t, vout))
stats(4, RSUM, 6, 5)
A("s_lshl_b32 s%d, s%d, 7" % (T0, sW))
A("s_add_u32 s%d, s%d, %d" % (T0, T0, TBL))
A("v_lshl_add_u32 v3, v15, 3, s%d" % T0)
A("s_mov_b64 exec, s[%d:%d]" % (MD, MD + 1))
A("ds_write_b64 v3, v[6:7]"); LG.issue()
exec_all()
A("v_lshl_add_u32 v4, v14, 5, s%d" % T0)
ST = 108
A("ds_read_b64 %s, v3" % v(ST, 2)); LG.issue()
A("ds_read_b128 %s, v4" % v(ST + 4, 4)); LG.issue()
A("ds_read_b128 %s, v4 offset:16" % v(ST + 8, 4)); LG.issue()
LG.wait_all()
barrier()
CSV = 120
A("v_lshlrev_b32 v3, 4, v14")
A("v_add_u32 v3, %d, v3" % CSB)
for t in range(4):
    A("ds_read_b128 %s, v3 offset:%d" % (v(CSV + 4 * t, 4), 64 * t)); LG.issue()
A("v_lshlrev_b32 v4, 2, v15")
A("v_add_u32 v4, %d, v4" % CSB)
for dt in range(2):
    A("ds_read_b32 v%d, v4 offset:%d" % (CSV + 16 + dt, 256 + 64 * dt)); LG.issue()
qs = (28 ** -0.5) * math.log2(math.e)
A("v_mul_f32 v110, %s, v%d" % (f32(qs), ST))
A("v_mul_f32 v111, %s, v%d" % (f32(qs), ST + 1))
LG.wait_all()
for t in range(4):
    rs, nb = (110, 111) if t < 2 else (ST, ST + 1)
    for r in range(4):
        A("v_mul_f32 v%d, v%d, v%d" % (CSV + 4 * t + r, CSV + 4 * t + r, nb))
        A("v_fma_f32 v%d, v%d, v%d, v%d" % (ACC + 4 * t + r, ACC + 4 * t + r, rs, CSV + 4 * t + r))
for dt in range(2):
    for r in range(4):
        A("v_mul_f32 v3, v%d, v%d" % (CSV + 16 + dt, ST + 4 + 2 * r + 1))
        A("v_fma_f32 v%d, v%d, v%d, v3" % (ACC + 16 + 4 * dt + r, ACC + 16 + 4 * dt + r, ST + 4 + 2 * r))
KFR, VFR = 140, 144
for i in range(4):
    A("v_cvt_pk_bf16_f32 v%d, v%d, v%d" % (QF + i, ACC + 2 * i, ACC + 2 * i + 1))
    A("v_cvt_pk_bf16_f32 v%d, v%d, v%d" % (KFR + i, ACC + 8 + 2 * i, ACC + 8 + 2 * i + 1))
    A("v_cvt_pk_bf16_f32 v%d, v%d, v%d" % (VFR + i, ACC + 16 + 2 * i, ACC + 16 + 2 * i + 1))
set_exec(0, 0xFFFF0000)
for r in (QF + 2, QF + 3, KFR + 2, KFR + 3):
    A("v_mov_b32 v%d, 0" % r)
set_exec(0x10001000, 0x10001000)
A("v_mov_b32 v%d, 0x3f803f80\nv_mov_b32 v%d, 0x3f803f80" % (VFR + 2, VFR + 3))
set_exec(0xE000E000, 0xE000E000)
A("v_mov_b32 v%d, 0\nv_mov_b32 v%d, 0" % (VFR + 2, VFR + 3))
exec_all()
sKV = 11
A("s_lshl_b32 s%d, s%d, 14" % (sKV, sSLOT))
A("s_lshl_b32 s%d, s%d, 10" % (T1, sW))
A("s_add_u32 s%d, s%d, s%d" % (sKV, sKV, T1))
A("s_add_u32 s%d, s%d, 0x%x" % (sKV, sKV, KVB))
A("buffer_store_dwordx4 %s, v%d, %s, s%d offen sc1" % (v(KFR, 4), vL16, s(SWS, 4), sKV)); VM.issue()
A("v_add_u32 v3, s%d, v%d" % (T1, vL16))
A("ds_write_b128 v3, %s offset:%d" % (v(KFR, 4), 16384)); LG.issue()
A("s_lshr_b32 s%d, s%d, 1" % (T2, sW))
A("s_lshl_b32 s%d, s%d, 11" % (T2, T2))
A("s_and_b32 s%d, s%d, 1" % (T3, sW))
A("s_lshl_b32 s%d, s%d, 3" % (T3, T3))
A("s_add_u32 s%d, s%d, s%d" % (T2, T2, T3))
A("v_add_u32 v4, s%d, v%d" % (T2, vL16))
A("ds_write_b64 v4, %s offset:%d" % (v(VFR, 2), VREG + 16384)); LG.issue()
A("ds_write_b64 v4, %s offset:%d" % (v(VFR + 2, 2), VREG + 16384 + 1024)); LG.issue()
LG.wait_all()
barrier()
A("ds_read_b128 %s, v3 offset:%d" % (v(148, 4), VREG + 16384)); LG.issue()
A("s_add_u32 s%d, s%d, 8192" % (sKV, sKV))
LG.wait_all()
A("buffer_store_dwordx4 %s, v%d, %s, s%d offen sc1" % (v(148, 4), vL16, s(SWS, 4), sKV)); VM.issue()
L7 = if_wave7()
Lp = A.label(); Ld = A.label()
A("s_mov_b32 s%d, 0" % sSPIN)
A("v_mov_b32 v3, 0")
A.place(Lp)
A("buffer_load_dwordx2 %s, v3, %s, 0 offen sc1" % (v(NON, 2), s(SDBG, 4)))
A("s_add_u32 s%d, s%d, 1" % (sSPIN, sSPIN))
A("s_cmp_gt_u32 s%d, 0x40000" % sSPIN)
A("s_waitcnt vmcnt(0)")
A("s_cbranch_scc1 %s" % Ld)
A("v_cmp_eq_u32 vcc, 0, v%d" % (NON + 1))
A("s_cbranch_vccnz %s" % Lp)
A.place(Ld)
A.place(L7)
VM.wait_all()
barrier()
L7 = if_wave7()
flag_store(FL_KV)
stamp()
Lsk = A.label()
A("s_cmp_eq_u32 s%d, 0" % sRB)
A("s_cbranch_scc1 %s" % Lsk)
A("s_sub_u32 s%d, s%d, 16" % (T0, sSLOT))
A("s_lshl_b32 s%d, s%d, 7" % (T0, T0))
A("v_lshlrev_b32 v3, 11, v%d" % vL)
A("v_sub_u32 v3, s%d, v3" % T0)
A("s_cmp_eq_u32 s%d, 1" % sRB)
A("s_cselect_b32 s%d, 1, 3" % T1)
A("s_mov_b32 exec_hi, 0")
A("s_mov_b32 exec_lo, s%d" % T1)
A("s_mov_b32 s%d, 0x%x" % (T0, FL_KV))
poll_loop("v3", T0)
exec_all()
A.place(Lsk)
A.place(L7)
Lnr = A.label()
A("s_cmp_eq_u32 s%d, 0" % sHAS)
A("s_cbranch_scc1 %s" % Lnr)
for t in range(4):
    A("ds_write_b128 v11, %s offset:%d" % (v(RS + 4 * t, 4), t * 1024)); LG.issue()
A("s_cmp_eq_u32 s%d, 1" % sISWO)
A("s_cselect_b32 s%d, 4, 8" % T0)
A("s_cselect_b32 s%d, 16, 4" % T1)
A("s_lshl_b32 s%d, s%d, 7" % (T0, T0))
A("s_lshl_b32 s%d, s%d, 7" % (T1, T1))
A("v_mul_lo_u32 v3, v14, s%d" % T0)
A("v_lshrrev_b32 v4, 2, v15")
A("v_lshl_add_u32 v3, v4, 7, v3")
A("v_and_b32 v4, 3, v%d" % vL)
A("v_lshl_add_u32 v3, v4, 3, v3")
A("v_add_u32 v3, s%d, v3" % sXL)
A("v_add_u32 v4, s%d, v3" % T1)
RO = 72
LG.wait_all()
for t4 in range(4):
    A("ds_read_b64_tr_b16 %s, v3 offset:%d" % (v(RO + 4 * t4, 2), t4 * 32)); LG.issue()
    A("ds_read_b64_tr_b16 %s, v4 offset:%d" % (v(RO + 4 * t4 + 2, 2), t4 * 32)); LG.issue()
LG.wait_all()
Lnz = A.label()
A("s_cmp_eq_u32 s%d, 0" % sISWO)
A("s_cbranch_scc1 %s" % Lnz)
set_exec(0, 0xFFFF0000)
for t4 in range(4):
    A("v_mov_b32 v%d, 0\nv_mov_b32 v%d, 0" % (RO + 4 * t4 + 2, RO + 4 * t4 + 3))
exec_all()
A.place(Lnz)
A("s_mov_b32 s%d, s%d" % (T0, sRDST))
for t4 in range(4):
    A("buffer_store_dwordx4 %s, v%d, %s, s%d offen sc1" % (v(RO + 4 * t4, 4), vL16, s(SWS, 4), T0))
    if t4 < 3:
        A("s_add_u32 s%d, s%d, s%d" % (T0, T0, sRSTR))
A.place(Lnr)
VM.wait_all()
barrier()
stamp()
A("s_lshr_b32 s%d, s%d, 2" % (T0, sW))
A("s_and_b32 s%d, s%d, 3" % (T1, sW))
A("s_add_u32 s%d, s%d, s%d" % (T2, sRB, T0))
A("s_lshl_b32 s%d, s%d, 4" % (T3, T0))
A("s_add_u32 s%d, s%d, s%d" % (T3, T3, sSLOT))
A("s_sub_u32 s%d, s%d, 32" % (T3, T3))
A("s_lshl_b32 s%d, s%d, 14" % (T3, T3))
A("s_lshl_b32 s%d, s%d, 12" % (T4, T1))
A("s_add_u32 s%d, s%d, s%d" % (T3, T3, T4))
A("s_add_u32 s%d, s%d, 0x%x" % (T3, T3, KVB))
A("s_cmp_lt_u32 s%d, 2" % T2)
A("s_cselect_b32 s%d, 0x%x, s%d" % (T3, WS_SIZE, T3))
A("s_lshl_b32 s%d, s%d, 13" % (T4, T0))
A("s_and_b32 s%d, s%d, 1" % (T5, T1))
A("s_lshl_b32 s%d, s%d, 12" % (T5, T5))
A("s_add_u32 s%d, s%d, s%d" % (T4, T4, T5))
A("s_cmp_ge_u32 s%d, 2" % T1)
A("s_cselect_b32 s%d, %d, 0" % (T5, VREG))
A("s_add_u32 m0, s%d, s%d" % (T4, T5))
for i in range(4):
    A("buffer_load_dwordx4 v%d, %s, s%d offen offset:%d sc1 lds" % (vL16, s(SWS, 4), T3, i * 1024)); VM.issue()
L7 = if_wave7()
A("s_lshl_b32 s%d, s2, 3" % T0)
A("s_add_u32 s%d, s%d, 0x%x" % (T0, T0, FL_RP))
A("s_mov_b64 exec, 1")
A("buffer_store_dwordx2 %s, %s, %s, s%d offen sc1" % (v(NON, 2), v(vL16), s(SWS, 4), T0))
exec_all()
A.place(L7)
A("s_lshr_b32 s%d, s%d, 1" % (T0, sW))
A("s_lshl_b32 s%d, s%d, 11" % (T0, T0))
A("v_add_u32 v3, s%d, v%d" % (T0, vL16))
A("s_and_b32 s%d, s%d, 1" % (T1, sW))
A("s_lshl_b32 s%d, s%d, 4" % (T1, T1))
A("v_lshlrev_b32 v4, 2, v14")
A("v_sub_u32 v4, v15, v4")
A("v_add_u32 v4, s%d, v4" % T1)
A("v_mov_b32 v5, 0xff800000")
VM.wait_all()
barrier()
stamp()
SS, OO, KB, VB = 32, 104, 112, 184
for i in range(18):
    A("ds_read_b128 %s, v3 offset:%d" % (v(KB + 4 * i, 4), i * 1024)); LG.issue(("k", i))
    if i >= 8:
        j = i - 8
        LG.wait(("k", j)); mfma(SS + 4 * j, KB + 4 * j, QF)
for j in range(10, 18):
    LG.wait(("k", j)); mfma(SS + 4 * j, KB + 4 * j, QF)
    jj = j - 10
    A("ds_read_b128 %s, v3 offset:%d" % (v(VB + 4 * jj, 4), VREG + jj * 1024)); LG.issue(("v", jj))
MS = [12, 76, 78, 80]
def mask_group(items):
    for k in range(0, len(items), 4):
        grp = items[k:k + 4]
        for (q, (reg, op, cst)) in enumerate(grp):
            A("%s s[%d:%d], %d, v4" % (op, MS[q], MS[q] + 1, cst))
        for (q, (reg, op, cst)) in enumerate(grp):
            A("v_cndmask_b32 v%d, v5, v%d, s[%d:%d]" % (reg, reg, MS[q], MS[q] + 1))
mask_group([(SS + 4 * sl + r, "v_cmp_gt_i32", 16 * sl + r) for sl in (0, 1) for r in range(4)])
for jj in range(8, 15):
    A("ds_read_b128 %s, v3 offset:%d" % (v(VB + 4 * jj, 4), VREG + jj * 1024)); LG.issue(("v", jj))
mask_group([(SS + 4 * sl + r, "v_cmp_le_i32", 16 * (sl - 16) + r) for sl in (16, 17) for r in range(4)])
Lneg = A.label()
A("s_cmp_ge_u32 s%d, 2" % sRB)
A("s_cbranch_scc1 %s" % Lneg)
A("s_lshl_b32 s%d, s%d, 3" % (T0, sRB))
A("s_sub_u32 s%d, 16, s%d" % (T0, T0))
A("s_and_b32 s%d, s%d, 6" % (T1, sW))
A("s_sub_u32 s%d, s%d, s%d" % (T0, T0, T1))
for sl in range(16):
    A("s_cmp_gt_i32 s%d, %d" % (T0, sl))
    A("s_cbranch_scc0 %s" % Lneg)
    for r in range(4):
        A("v_mov_b32 v%d, v5" % (SS + 4 * sl + r))
A.place(Lneg)
A("v_max3_f32 v6, v%d, v%d, v%d" % (SS, SS + 1, SS + 2))
A("v_max3_f32 v7, v%d, v%d, v%d" % (SS + 3, SS + 4, SS + 5))
for i in range(6, 72, 4):
    A("v_max3_f32 v6, v6, v%d, v%d" % (SS + i, SS + i + 1))
    if i + 3 < 72:
        A("v_max3_f32 v7, v7, v%d, v%d" % (SS + i + 2, SS + i + 3))
A("v_max_f32 v6, v6, v7")
A("v_mov_b32 v7, v6")
A("v_permlane32_swap_b32 v6, v7")
A("v_max_f32 v6, v6, v7")
A("v_mov_b32 v7, v6")
A("v_permlane16_swap_b32 v6, v7")
A("v_max_f32 v6, v6, v7")
for jj in range(15, 18):
    A("ds_read_b128 %s, v3 offset:%d" % (v(VB + 4 * jj, 4), VREG + jj * 1024)); LG.issue(("v", jj))
for p in range(9):
    b = SS + 8 * p
    for i in range(8):
        A("v_sub_f32 v%d, v%d, v6" % (b + i, b + i))
    for i in range(8):
        A("v_exp_f32 v%d, v%d" % (b + i, b + i))
    for i in range(4):
        A("v_cvt_pk_bf16_f32 v%d, v%d, v%d" % (b + i, b + 2 * i, b + 2 * i + 1))
    for dt in range(2):
        LG.wait(("v", 2 * p + dt))
        mfma(OO + 4 * dt, VB + 4 * (2 * p + dt), b, None if p == 0 else OO + 4 * dt)
A("v_mov_b32 v6, v%d" % (OO + 4))
A("v_mov_b32 v7, v6")
A("v_permlane32_swap_b32 v6, v7")
A("v_mov_b32 v6, v7")
A("v_permlane16_swap_b32 v7, v6")
A("v_rcp_f32 v6, v6")
for i in range(8):
    A("v_mul_f32 v%d, v%d, v6" % (OO + i, OO + i))
for i in range(4):
    A("v_cvt_pk_bf16_f32 v%d, v%d, v%d" % (KFR + i, OO + 2 * i, OO + 2 * i + 1))
A("s_lshl_b32 s%d, s%d, 3" % (T0, sRB))
A("s_add_u32 s%d, s%d, s%d" % (T0, T0, sW))
A("s_lshl_b32 s%d, s%d, 4" % (T0, T0))
A("s_add_u32 s%d, s%d, s%d" % (T0, T0, sJ))
A("s_lshl_b32 s%d, s%d, 10" % (T0, T0))
A("s_add_u32 s%d, s%d, 0x%x" % (T0, T0, OFB))
A("buffer_store_dwordx4 %s, v%d, %s, s%d offen sc1" % (v(KFR, 4), vL16, s(SWS, 4), T0)); VM.issue()
L7 = if_wave7()
Lp = A.label(); Ld = A.label()
A("s_mov_b32 s%d, 0" % sSPIN)
A("s_mov_b32 s%d, 0x%x" % (T0, FL_RP))
A.place(Lp)
A("buffer_load_dwordx4 v[32:35], v%d, %s, s%d offen sc1" % (vL16, s(SWS, 4), T0))
A("buffer_load_dwordx4 v[36:39], v%d, %s, s%d offen offset:1024 sc1" % (vL16, s(SWS, 4), T0))
A("s_add_u32 s%d, s%d, 1" % (sSPIN, sSPIN))
A("s_cmp_gt_u32 s%d, 0x40000" % sSPIN)
A("s_waitcnt vmcnt(0)")
A("s_cbranch_scc1 %s" % Ld)
for q in range(4):
    A("v_cmp_ne_u64 s[%d:%d], %s, %s" % (MS[q], MS[q] + 1, v(32 + 2 * q, 2), v(NON, 2)))
A("s_or_b64 s[12:13], s[12:13], s[76:77]")
A("s_or_b64 s[78:79], s[78:79], s[80:81]")
A("s_or_b64 s[12:13], s[12:13], s[78:79]")
A("s_cbranch_scc1 %s" % Lp)
A.place(Ld)
A.place(L7)
VM.wait_all()
barrier()
stamp()

Lw7 = A.label("L_w7path")
A("s_cmp_eq_u32 s%d, 7" % sW)
A("s_cbranch_scc1 %s" % Lw7)

sNT, sMT3, sFT = 3, 11, 14
def tile_ids():
    A("s_and_b32 s%d, s%d, 3" % (T0, sJ))
    A("s_mul_i32 s%d, s%d, 7" % (sNT, T0))
    A("s_add_u32 s%d, s%d, s%d" % (sNT, sNT, sW))
    A("s_lshr_b32 s%d, s%d, 2" % (T0, sJ))
    A("s_lshl_b32 s%d, s%d, 1" % (T0, T0))
    A("s_lshl_b32 s%d, s%d, 3" % (sMT3, sRB))
    A("s_add_u32 s%d, s%d, s%d" % (sMT3, sMT3, T0))
    A("s_mul_i32 s%d, s%d, 7" % (sFT, sJ))
    A("s_add_u32 s%d, s%d, s%d" % (sFT, sFT, sW))

def o_dma():
    A("s_lshl_b32 s%d, s%d, 14" % (T0, sMT3))
    A("s_lshl_b32 s%d, s%d, 12" % (T1, sW))
    A("s_add_u32 s%d, s%d, s%d" % (T0, T0, T1))
    A("s_add_u32 s%d, s%d, 0x%x" % (T0, T0, OFB))
    A("s_add_u32 m0, s%d, %d" % (T1, OLDS))
    for i in range(4):
        A("buffer_load_dwordx4 v%d, %s, s%d offen offset:%d sc1 lds" % (vL16, s(SWS, 4), T0, i * 1024)); VM.issue(("odma", i))

def h_dma():
    A("s_lshl_b32 s%d, s%d, 3" % (T0, sRB))
    A("s_add_u32 s%d, s%d, s%d" % (T0, T0, sW))
    A("s_mul_i32 s%d, s%d, 14336" % (T0, T0))
    A("s_add_u32 s%d, s%d, 0x%x" % (T0, T0, HFB))
    A("s_mul_i32 s%d, s%d, 14336" % (T1, sW))
    for ks in range(14):
        if ks % 4 == 0:
            A("s_add_u32 m0, s%d, %d" % (T1, ks * 1024))
            if ks:
                A("s_add_u32 s%d, s%d, 4096" % (T0, T0))
        A("buffer_load_dwordx4 v%d, %s, s%d offen offset:%d sc1 lds" % (vL16, s(SWS, 4), T0, (ks % 4) * 1024)); VM.issue(("hdma", ks))

def act_dma():
    A("s_mul_i32 s%d, s%d, 57344" % (T0, sMT3))
    A("s_lshl_b32 s%d, s%d, 10" % (T1, sW))
    A("s_add_u32 s%d, s%d, s%d" % (T0, T0, T1))
    A("s_add_u32 s%d, s%d, 0x%x" % (T0, T0, ACTB))
    for c in range(7):
        for a in range(2):
            off = c * 8192 + a * 57344
            A("s_add_u32 m0, s%d, %d" % (T1, off))
            A("s_add_u32 s%d, s%d, %d" % (T2, T0, off))
            A("buffer_load_dwordx4 v%d, %s, s%d offen sc1 lds" % (vL16, s(SWS, 4), T2)); VM.issue(("adma", c))

def wload(reg, sbase, frag, tag=None):
    A("s_add_u32 s%d, s%d, %d" % (T5, sbase, (frag // 4) * 4096))
    A("buffer_load_dwordx4 %s, v%d, %s, s%d offen offset:%d sc1" % (v(reg, 4), vL16, s(SWS, 4), T5, (frag % 4) * 1024)); VM.issue(tag)

tile_ids()
sWO, sWGU, sWD = 15, 68, 69
A("s_lshl_b32 s%d, s%d, 14" % (sWO, sNT))
A("s_add_u32 s%d, s%d, 0x%x" % (sWO, sWO, WOF))
A("s_mul_i32 s%d, s%d, 28672" % (sWGU, sFT))
A("s_add_u32 s%d, s%d, 0x%x" % (sWGU, sWGU, WGUF))
A("s_mul_i32 s%d, s%d, 57344" % (sWD, sNT))
A("s_add_u32 s%d, s%d, 0x%x" % (sWD, sWD, WDF))
WOR, WGR, AC4, CS4, FR = 176, 64, 176, 240, 32
for hd in range(16):
    wload(WOR + 4 * hd, sWO, hd, ("wo", hd))
barrier()
o_dma()
for fr in range(12):
    wload(WGR + 4 * fr, sWGU, fr, ("wgu", fr))
A("v_and_b32 v5, 1, v14")
A("v_lshrrev_b32 v6, 1, v14")
A("v_lshlrev_b32 v7, 4, v15")
A("v_lshl_add_u32 v7, v6, 8, v7")
A("v_mul_u32_u24 v8, 14336, v5")
A("v_add_u32 v8, v8, v7")
A("v_mul_u32_u24 v9, 57344, v5")
A("v_add_u32 v9, v9, v7")
A("v_lshl_add_u32 v10, v5, 4, v15")
A("v_mul_u32_u24 v10, 896, v10")
A("v_lshl_add_u32 v10, v6, 4, v10")
A("v_add_u32 v3, %d, v%d" % (OLDS, vL16))
VM.wait(("odma", 3))
barrier()
AC3 = 240
def p3_read(hd):
    for a in range(2):
        A("ds_read_b128 %s, v3 offset:%d" % (v(FR + (hd % 4) * 8 + 4 * a, 4), a * 16384 + hd * 1024)); LG.issue(("o", hd, a))
for hd in range(4):
    p3_read(hd)
for hd in range(16):
    for a in range(2):
        LG.wait(("o", hd, a))
        mfma(AC3 + 4 * a, WOR + 4 * hd, FR + (hd % 4) * 8 + 4 * a, None if hd == 0 else AC3 + 4 * a)
    if hd + 4 < 16:
        p3_read(hd + 4)
for a in range(2):
    for i in range(2):
        A("v_lshlrev_b32 v%d, 16, v%d" % (FR + 4 * a + 2 * i, XRES + 2 * a + i))
        A("v_and_b32 v%d, 0xffff0000, v%d" % (FR + 4 * a + 2 * i + 1, XRES + 2 * a + i))
for i in range(8):
    A("v_add_f32 v%d, v%d, v%d" % (FR + i, FR + i, AC3 + i))
HPK = XRES
for i in range(4):
    A("v_cvt_pk_bf16_f32 v%d, v%d, v%d" % (HPK + i, FR + 2 * i, FR + 2 * i + 1))
for i in range(4):
    A("v_mov_b32 v%d, v%d" % (FR + 8 + i, HPK + i))
A("v_permlane16_swap_b32 v%d, v%d" % (FR + 8, FR + 10))
A("v_permlane16_swap_b32 v%d, v%d" % (FR + 9, FR + 11))
A("s_mul_i32 s%d, s%d, 14336" % (T0, sMT3))
A("s_lshl_b32 s%d, s%d, 9" % (T1, sNT))
A("s_add_u32 s%d, s%d, s%d" % (T0, T0, T1))
A("s_add_u32 s%d, s%d, 0x%x" % (T0, T0, HFB))
A("buffer_store_dwordx4 %s, v8, %s, s%d offen sc1" % (v(FR + 8, 4), s(SWS, 4), T0)); VM.issue()
VM.wait_all()
barrier()
for fr in range(12, 28):
    wload(WGR + 4 * fr, sWGU, fr, ("wgu", fr))
barrier()
h_dma()
for ks in range(14):
    for gu in range(2):
        VM.wait(("wgu", 2 * ks + gu))
        mfma(CS4 + 4 * gu, WGR + 8 * ks + 4 * gu, ONES, None if ks == 0 else CS4 + 4 * gu)
def p4_read(ks, m):
    va = vL16 if m < 4 else vL16B
    A("ds_read_b128 %s, v%d offset:%d" % (v(FR + 4 * m, 4), va, (m % 4) * 14336 + ks * 1024)); LG.issue(("h", ks, m))
VM.wait(("hdma", 1))
barrier()
for m in range(8):
    p4_read(0, m)
for ks in range(14):
    if ks % 2 == 1 and ks + 1 < 14:
        VM.wait(("hdma", ks + 2))
        barrier()
    for m in range(8):
        LG.wait(("h", ks, m))
        for gu in range(2):
            ac = AC4 + 8 * m + 4 * gu
            mfma(ac, WGR + 8 * ks + 4 * gu, FR + 4 * m, None if ks == 0 else ac)
        if ks + 1 < 14:
            p4_read(ks + 1, m)
    for gu in range(2):
        wload(WGR + 8 * ks + 4 * gu, sWD, 2 * ks + gu, ("wd", 2 * ks + gu))
barrier()
A("v_lshlrev_b32 v3, 3, v15")
A("v_add_u32 v3, %d, v3" % TBL)
for m in range(8):
    A("ds_read_b64 %s, v3 offset:%d" % (v(FR + 2 * m, 2), 128 * m)); LG.issue(("st", m))
A("s_mul_i32 s%d, s%d, %d" % (T0, sRB, 8 * 57344))
A("s_lshl_b32 s%d, s%d, 9" % (T1, sFT))
A("s_add_u32 s%d, s%d, s%d" % (T0, T0, T1))
A("s_add_u32 s%d, s%d, 0x%x" % (T0, T0, ACTB))
A("s_mov_b32 s%d, %s" % (T2, f32(-math.log2(math.e))))
TM = 48
for mp in range(4):
    for a in range(2):
        m = 2 * mp + a
        LG.wait(("st", m))
        rs, nb = FR + 2 * m, FR + 2 * m + 1
        g0 = AC4 + 8 * m
        for r in range(8):
            A("v_mul_f32 v%d, v%d, v%d" % (TM + r, CS4 + r, nb))
        for r in range(8):
            A("v_fma_f32 v%d, v%d, v%d, v%d" % (g0 + r, g0 + r, rs, TM + r))
        for r in range(4):
            A("v_mul_f32 v%d, s%d, v%d" % (TM + r, T2, g0 + r))
        for r in range(4):
            A("v_exp_f32 v%d, v%d" % (TM + r, TM + r))
        for r in range(4):
            A("v_mul_f32 v%d, v%d, v%d" % (g0 + r, g0 + r, g0 + 4 + r))
        for r in range(4):
            A("v_add_f32 v%d, 1.0, v%d" % (TM + r, TM + r))
        for r in range(4):
            A("v_rcp_f32 v%d, v%d" % (TM + r, TM + r))
        for r in range(4):
            A("v_mul_f32 v%d, v%d, v%d" % (g0 + r, g0 + r, TM + r))
        pk = TM + 8 + 4 * (mp & 1) + 2 * a
        for i in range(2):
            A("v_cvt_pk_bf16_f32 v%d, v%d, v%d" % (pk + i, g0 + 2 * i, g0 + 2 * i + 1))
    pk = TM + 8 + 4 * (mp & 1)
    A("v_permlane16_swap_b32 v%d, v%d" % (pk, pk + 2))
    A("v_permlane16_swap_b32 v%d, v%d" % (pk + 1, pk + 3))
    A("buffer_store_dwordx4 %s, v9, %s, s%d offen sc1" % (v(pk, 4), s(SWS, 4), T0)); VM.issue()
    if mp < 3:
        A("s_add_u32 s%d, s%d, %d" % (T0, T0, 2 * 57344))
VM.wait_all()
barrier()
def wdreg(ks):
    return 64 + 4 * (ks % 48)
for ks in range(28, 48):
    wload(wdreg(ks), sWD, ks, ("wd", ks))
barrier()
act_dma()
AC5 = 56
def p5_read(ks):
    for a in range(2):
        A("ds_read_b128 %s, v%d offset:%d" % (v(FR + (ks % 3) * 8 + 4 * a, 4), vL16 if a == 0 else vL16B, ks * 1024)); LG.issue(("a", ks, a))
PD = 3
VM.wait(("adma", 0))
barrier()
for ks in range(PD):
    p5_read(ks)
for ks in range(56):
    VM.wait(("wd", ks))
    for a in range(2):
        LG.wait(("a", ks, a))
        mfma(AC5 + 4 * a, wdreg(ks), FR + (ks % 3) * 8 + 4 * a, None if ks == 0 else AC5 + 4 * a)
    if ks < 8:
        wload(wdreg(ks + 48), sWD, ks + 48, ("wd", ks + 48))
    nk = ks + PD
    if nk < 56:
        if nk % 8 == 0:
            VM.wait(("adma", nk // 8))
            barrier()
        p5_read(nk)
for a in range(2):
    for i in range(2):
        A("v_lshlrev_b32 v%d, 16, v%d" % (FR + 4 * a + 2 * i, HPK + 2 * a + i))
        A("v_and_b32 v%d, 0xffff0000, v%d" % (FR + 4 * a + 2 * i + 1, HPK + 2 * a + i))
for i in range(8):
    A("v_add_f32 v%d, v%d, v%d" % (FR + i, FR + i, AC5 + i))
for i in range(4):
    A("v_cvt_pk_bf16_f32 v%d, v%d, v%d" % (FR + 8 + i, FR + 2 * i, FR + 2 * i + 1))
A("v_permlane16_swap_b32 v%d, v%d" % (FR + 8, FR + 10))
A("v_permlane16_swap_b32 v%d, v%d" % (FR + 9, FR + 11))
A("s_mul_i32 s%d, s%d, %d" % (T0, sMT3, 16 * 896))
A("s_lshl_b32 s%d, s%d, 5" % (T1, sNT))
A("s_add_u32 s%d, s%d, s%d" % (T0, T0, T1))
A("buffer_store_dwordx4 %s, v10, %s, s%d offen" % (v(FR + 8, 4), s(SOUT, 4), T0)); VM.issue()
A("s_branch L_end")

A.place(Lw7)
VM.done = VM.n - 1; LG.done = LG.n - 1
tile_ids()
flag_store(FL_O)
poll_team(FL_O)
stamp()
barrier()
o_dma()
VM.wait_all()
barrier()
stamp()
barrier()
flag_store(FL_H)
stamp()
poll_team(FL_H)
stamp()
barrier()
h_dma()
SG, SR = 64, 96
VM.wait(("hdma", 1))
barrier()
for m in range(8):
    p4_read(0, m)
for ks in range(14):
    if ks % 2 == 1 and ks + 1 < 14:
        VM.wait(("hdma", ks + 2))
        barrier()
    for m in range(8):
        LG.wait(("h", ks, m))
        mfma(SG + 4 * m, FR + 4 * m, FR + 4 * m, None if ks == 0 else SG + 4 * m)
        mfma(SR + 4 * m, ONES, FR + 4 * m, None if ks == 0 else SR + 4 * m)
        if ks + 1 < 14:
            p4_read(ks + 1, m)
for (r, lo, hi) in ((M1, 0x22222222, 0x22222222), (M2, 0x44444444, 0x44444444), (M3, 0x88888888, 0x88888888)):
    A("s_mov_b32 s%d, 0x%x\ns_mov_b32 s%d, 0x%x" % (r, lo, r + 1, hi))
A("v_lshlrev_b32 v3, 3, v15")
A("v_add_u32 v3, %d, v3" % TBL)
for m in range(8):
    g = SG + 4 * m
    A("v_cndmask_b32 v4, v%d, v%d, s[%d:%d]" % (g, g + 1, M1, M1 + 1))
    A("v_cndmask_b32 v4, v4, v%d, s[%d:%d]" % (g + 2, M2, M2 + 1))
    A("v_cndmask_b32 v4, v4, v%d, s[%d:%d]" % (g + 3, M3, M3 + 1))
    stats(4, SR + 4 * m, 128 + 2 * m, 5)
A("s_mov_b64 exec, s[%d:%d]" % (MD, MD + 1))
for m in range(8):
    A("ds_write_b64 v3, %s offset:%d" % (v(128 + 2 * m, 2), 128 * m)); LG.issue()
exec_all()
LG.wait_all()
barrier()
stamp()
barrier()
flag_store(FL_ACT)
stamp()
poll_team(FL_ACT)
stamp()
barrier()
act_dma()
for c in range(7):
    VM.wait(("adma", c))
    barrier()
stamp()
if STAMPS:
    A("s_lshl_b32 s%d, s2, 6" % T0)
    A("s_add_u32 s%d, s%d, 0x%x" % (T0, T0, STAMP_OFF))
    for i in range(16):
        A("v_mov_b32 v%d, s%d" % (32 + i, sSTAMP + i))
    A("s_mov_b64 exec, 1")
    for q in range(4):
        A("buffer_store_dwordx4 %s, v%d, %s, s%d offen offset:%d" % (v(32 + 4 * q, 4), vL16, s(SWS, 4), T0, 16 * q))
A.place("L_end")
A("s_endpgm")
A.raw("L_code_end:")
A.raw('.section .rodata,"a"\n.p2align 6\n.amdhsa_kernel %s_kernel' % NAME)
A.raw("""  .amdhsa_next_free_vgpr 256
  .amdhsa_next_free_sgpr 102
  .amdhsa_accum_offset 256
  .amdhsa_group_segment_fixed_size 0
  .amdhsa_kernarg_size 80
  .amdhsa_user_sgpr_count 2
  .amdhsa_user_sgpr_kernarg_segment_ptr 1
  .amdhsa_system_sgpr_workgroup_id_x 1
.end_amdhsa_kernel""")
out = [a for a in sys.argv[1:] if not a.startswith("--")]
txt = A.text()
if out:
    open(out[0], "w").write(txt)
else:
    sys.stdout.write(txt)
sys.stderr.write("nops inserted: %d, stamps: %d\n" % (A.nops_inserted, nstamp[0]))
```

```python
import sys, math, struct
from asmlib import Asm, v, s

NAME = "sequential_preLN__sliding_block__swiglu_ffn__prompt"
STAMPS = "--stamps" in sys.argv
def opt(name, default):
    for a in sys.argv:
        if a.startswith("--%s=" % name):
            return a.split("=")[1]
    return default

FL_KV, FL_O, FL_H, FL_ACT, FL_ACTB = 0, 0x8000, 0x10000, 0x18000, 0x28000
FL_RP1 = 0x20000
FL_HELLO = 0x21000
FL_RP2 = 0x22000
STAMP_OFF = 0x40000
FASTOFF = 0x80000
WOF = 0x100000
WGUF = 0x200000
WDF = 0x600000
KVB = 0x800000
OFB = 0xC00000
HFB = 0xE00000
ACTB = 0x1000000
WS_SIZE = 0x1700000
OOB = WS_SIZE + 0x100000
WQL = 57344
XST = 86016
RSC = XST + 49152
MISC = RSC + 24576
TBL = MISC
CSB = MISC + 2048
LFLAG = MISC + 2560
LDS_BYTES = MISC + 3072
OLDS = 114688
VREG = 24576

def f32(x):
    return "0x%08x" % struct.unpack("<I", struct.pack("<f", x))[0]

A = Asm()

class Cnt:
    def __init__(self, name, mx):
        self.name, self.mx, self.n, self.tags, self.done = name, mx, 0, {}, -1
    def issue(self, tag=None):
        if tag is not None:
            self.tags[tag] = self.n
        self.n += 1
    def wait(self, tag):
        i = self.tags[tag]
        if i <= self.done:
            return
        k = min(self.n - 1 - i, self.mx)
        A("s_waitcnt %s(%d)" % (self.name, k))
        self.done = self.n - 1 - k
    def wait_all(self):
        A("s_waitcnt %s(0)" % self.name)
        self.done = self.n - 1

VM = Cnt("vmcnt", 63)
LG = Cnt("lgkmcnt", 15)

SX, SWQ, SOUT, SDBG, SWS, SSRC, SCODE = 36, 40, 44, 48, 52, 56, 60
sW, sRB, sJ, sSLOT, sRPOK, sXCC = 64, 65, 66, 67, 68, 100
sRDST, sRSTR, sISWO, sHAS, sRPITCH, sRSRC = 70, 71, 72, 73, 74, 75
T0, T1, T2, T3, T4, T5 = 4, 5, 6, 7, 8, 9
sSPIN = 10
M1, M2, M3, MD = 76, 78, 80, 82
MS = [12, 76, 78, 80]
sSTAMP = 84
sNT, sMT3, sFT, sWO, sWGU, sWD = 22, 23, 16, 17, 18, 19
sR8, sRG = 24, 25
sROo, sTHo, sROg, sTHg, sROd, sTHd = 26, 27, 28, 29, 30, 31
nstamp = [0]

vL, vL16, vL16B = 0, 1, 2
vPOLL = 13
ONES, XRES, NON, PT, QF = 16, 20, 24, 26, 28

STAMP_SEL = opt("sel", "main").split(",")
def stamp(group="main", name=""):
    if not STAMPS or (group not in STAMP_SEL and group != "always"):
        return
    i = nstamp[0]; nstamp[0] += 1
    assert i < 16
    sys.stderr.write("stamp %d: %s %s\n" % (i, group, name))
    A("s_memtime s[12:13]" if "--cyc" in sys.argv else "s_memrealtime s[12:13]")
    A("s_waitcnt lgkmcnt(0)")
    LG.done = LG.n - 1
    A("s_mov_b32 s%d, s12" % (sSTAMP + i))

def mfma(d, a, b, c=None):
    cs = "0" if c is None else v(c, 4)
    A("v_mfma_f32_16x16x32_bf16 %s, %s, %s, %s" % (v(d, 4), v(a, 4), v(b, 4), cs))
def srd(r, lo, size):
    A("s_mov_b32 s%d, s%d" % (r, lo))
    A("s_mov_b32 s%d, s%d" % (r + 1, lo + 1))
    A("s_mov_b32 s%d, 0x%x" % (r + 2, size))
    A("s_mov_b32 s%d, 0x20000" % (r + 3))
def set_exec(lo, hi):
    A("s_mov_b32 exec_lo, 0x%x" % lo)
    A("s_mov_b32 exec_hi, 0x%x" % hi)
def exec_all():
    A("s_mov_b64 exec, -1")
def barrier():
    A("s_barrier")
def if_wave(w):
    L = A.label()
    A("s_cmp_lg_u32 s%d, %d" % (sW, w))
    A("s_cbranch_scc1 %s" % L)
    return L
def store_non(soff, sc):
    A("buffer_store_dwordx2 %s, %s, %s, s%d offen%s" % (v(NON, 2), v(vL16), s(SWS, 4), soff, sc))

def flag_stores(base):
    A("s_lshl_b32 s%d, s%d, 7" % (T0, sSLOT))
    L = if_wave(5)
    A("s_add_u32 s%d, s%d, 0x%x" % (T0, T0, base + FASTOFF))
    A("s_mov_b64 exec, 1")
    store_non(T0, "")
    exec_all()
    A.place(L)
    L = if_wave(6)
    A("s_add_u32 s%d, s%d, 0x%x" % (T0, T0, base))
    A("s_mov_b64 exec, 1")
    store_non(T0, " sc1")
    exec_all()
    A.place(L)

def packed_flag(base):
    A("s_lshl_b32 s%d, s%d, 3" % (T0, sSLOT))
    A("s_add_u32 s%d, s%d, 0x%x" % (T0, T0, base))
    A("s_mov_b64 exec, 1")
    store_non(T0, " sc1")
    exec_all()

def arrive(word, last, action):
    LG.wait_all()
    A("v_mov_b32 v12, 1")
    A("s_mov_b64 exec, 1")
    A("ds_add_rtn_u32 v12, v11, v12 offset:%d" % (4 * word))
    A("s_waitcnt lgkmcnt(0)")
    A("v_readfirstlane_b32 s%d, v12" % T1)
    L = A.label()
    A("s_cmp_lg_u32 s%d, %d" % (T1, last))
    A("s_cbranch_scc1 %s" % L)
    action()
    A.place(L)
    exec_all()
def both_flags(base):
    def f():
        A("s_lshl_b32 s%d, s%d, 7" % (T0, sSLOT))
        A("s_add_u32 s%d, s%d, 0x%x" % (T1, T0, base + FASTOFF))
        store_non(T1, "")
        A("s_add_u32 s%d, s%d, 0x%x" % (T1, T0, base))
        store_non(T1, " sc1")
    return f

def poll_flags(base):
    Lp = A.label(); Ld = A.label(); Lc = A.label()
    A("s_mov_b32 s%d, 0x%x" % (T0, base))
    A("s_mov_b32 s%d, 0" % sSPIN)
    A.place(Lp)
    A("buffer_load_dwordx2 %s, v%d, %s, s%d offen sc1" % (v(PT, 2), vPOLL, s(SWS, 4), T0))
    A("s_add_u32 s%d, s%d, 1" % (sSPIN, sSPIN))
    A("s_cmp_lg_u32 s%d, 0x1000" % sSPIN)
    A("s_cbranch_scc1 %s" % Lc)
    A("v_and_b32 v%d, 0x%x, v%d" % (vPOLL, FASTOFF - 1, vPOLL))
    A.place(Lc)
    A("s_cmp_gt_u32 s%d, 0x40000" % sSPIN)
    A("s_waitcnt vmcnt(0)")
    A("s_cbranch_scc1 %s" % Ld)
    A("v_cmp_ne_u64 vcc, %s, %s" % (v(PT, 2), v(NON, 2)))
    A("s_cbranch_vccnz %s" % Lp)
    A.place(Ld)
    exec_all()
def poll_team(base):
    A("s_mov_b64 exec, 0xffff")
    poll_flags(base)

def rp_check(base, tmp):
    A("s_mov_b32 s%d, 0x%x" % (T0, base))
    A("buffer_load_dwordx4 %s, v%d, %s, s%d offen sc1" % (v(tmp, 4), vL16, s(SWS, 4), T0))
    A("buffer_load_dwordx4 %s, v%d, %s, s%d offen offset:1024 sc1" % (v(tmp + 4, 4), vL16, s(SWS, 4), T0))
    A("s_waitcnt vmcnt(0)")
    for q in range(4):
        A("v_cmp_ne_u64 s[%d:%d], %s, %s" % (MS[q], MS[q] + 1, v(tmp + 2 * q, 2), v(NON, 2)))
    A("s_or_b64 s[12:13], s[12:13], s[76:77]")
    A("s_or_b64 s[78:79], s[78:79], s[80:81]")
    A("s_or_b64 s[12:13], s[12:13], s[78:79]")
def rp_publish(base, tmp, word):
    rp_check(base, tmp)
    A("s_cselect_b32 s%d, 0, 1" % sRPOK)
    A("v_mov_b32 v%d, s%d" % (tmp, sRPOK))
    A("ds_write_b32 v11, v%d offset:%d" % (tmp, 4 * word))
    A("s_waitcnt lgkmcnt(0)")
def rp_block(base, tmp):
    Lp = A.label(); Ld = A.label()
    A("s_cmp_lg_u32 s%d, 0" % sRPOK)
    A("s_cbranch_scc1 %s" % Ld)
    A("s_mov_b32 s%d, 0" % sSPIN)
    A.place(Lp)
    A("s_add_u32 s%d, s%d, 1" % (sSPIN, sSPIN))
    A("s_cmp_gt_u32 s%d, 0x40000" % sSPIN)
    A("s_cbranch_scc1 %s" % Ld)
    rp_check(base, tmp)
    A("s_cbranch_scc1 %s" % Lp)
    A.place(Ld)

A.raw("; @launch grid=(256,1,1) block=(512,1,1) lds=%d" % LDS_BYTES)
A.raw('.amdgcn_target "amdgcn-amd-amdhsa--gfx950"')
A.raw(".text")
A.raw(".globl %s_kernel\n.p2align 8\n.type %s_kernel,@function\n%s_kernel:" % (NAME, NAME, NAME))
A("s_cmp_ge_u32 s2, 256")
A("s_cbranch_scc1 L_end")
A("s_load_dwordx16 s[16:31], s[0:1], 0")
A("s_load_dwordx4 s[32:35], s[0:1], 64")
A("s_getpc_b64 s[60:61]")
A.raw("L_pc:")
A("s_mov_b32 s62, L_code_end - L_pc")
A("s_mov_b32 s63, 0x20000")
A("v_lshrrev_b32 v3, 6, v0")
A("v_and_b32 v%d, 63, v0" % vL)
A("v_readfirstlane_b32 s%d, v3" % sW)
A("v_lshlrev_b32 v%d, 4, v%d" % (vL16, vL))
A("v_add_u32 v%d, 57344, v%d" % (vL16B, vL16))
A("s_and_b32 s%d, s2, 7" % T0)
sIDX = 3
A("s_lshr_b32 s%d, s2, 3" % sIDX)
A("s_lshr_b32 s%d, s%d, 4" % (T2, sIDX))
A("s_lshl_b32 s%d, s%d, 1" % (sRB, T0))
A("s_add_u32 s%d, s%d, s%d" % (sRB, sRB, T2))
A("s_and_b32 s%d, s%d, 15" % (sJ, sIDX))
A("s_lshl_b32 s%d, s%d, 4" % (sSLOT, sRB))
A("s_add_u32 s%d, s%d, s%d" % (sSLOT, sSLOT, sJ))
A("s_getreg_b32 s%d, hwreg(HW_REG_XCC_ID, 0, 3)" % sXCC)
A("s_lshl_b32 s%d, s%d, 5" % (T2, sW))
A("s_add_u32 s%d, s%d, s%d" % (T2, T2, sIDX))
A("s_lshl_b32 s%d, s%d, 10" % (T2, T2))
A("buffer_load_dwordx4 v[172:175], v%d, s[60:63], s%d offen" % (vL16, T2)); VM.issue()
A("v_lshrrev_b32 v12, 3, v%d" % vL)
A("v_and_b32 v13, 7, v%d" % vL)
A("v_lshrrev_b32 v14, 4, v%d" % vL)
A("v_and_b32 v15, 15, v%d" % vL)
A("v_xor_b32 v3, v13, v14")
A("v_mul_u32_u24 v4, 896, v12")
A("v_lshl_add_u32 v3, v3, 4, v4")
A("v_xor_b32 v4, v13, v14")
A("v_xor_b32 v4, 4, v4")
A("v_mul_u32_u24 v5, 896, v12")
A("v_add_u32 v5, %d, v5" % (8 * 896))
A("v_lshl_add_u32 v4, v4, 4, v5")
A("v_lshrrev_b32 v5, 2, v%d" % vL)
A("v_mul_u32_u24 v7, 2688, v5")
A("v_lshrrev_b32 v5, 5, v%d" % vL)
A("v_lshlrev_b32 v5, 1, v5")
A("v_and_b32 v6, 3, v%d" % vL)
A("v_xor_b32 v5, v5, v6")
A("v_lshl_add_u32 v7, v5, 4, v7")
A("s_lshl_b32 s%d, s%d, 3" % (T0, sIDX))
A("s_add_u32 s%d, s%d, s%d" % (T0, T0, sW))
A("s_lshl_b32 s%d, s%d, 5" % (T1, T0))
A("v_add_u32 v178, s%d, v%d" % (T1, vL))
A("v_lshrrev_b32 v179, 1, v178")
A("v_mul_u32_u24 v179, 9363, v179")
A("v_lshrrev_b32 v179, 16, v179")
A("v_mul_u32_u24 v179, 7, v179")
A("v_add3_u32 v178, v178, v179, 7")
A("v_lshlrev_b32 v160, 7, v178")
A("s_lshl_b32 s%d, s%d, 4" % (T1, T0))
A("v_add_u32 v178, s%d, v%d" % (T1, vL))
A("v_mul_u32_u24 v179, 9363, v178")
A("v_lshrrev_b32 v179, 16, v179")
A("v_mul_u32_u24 v179, 14, v179")
A("v_add_u32 v178, v178, v179")
A("v_lshlrev_b32 v161, 7, v178")
A("v_lshlrev_b32 v162, 7, v%d" % vL)
A("s_waitcnt lgkmcnt(0)")
stamp("always", "start")
srd(SWQ, 18, 448 * 2688)
srd(SX, 16, 2048 * 896)
set_exec(0xffffffff, 0)
A("buffer_load_dword v172, v160, %s, 0 offen" % s(SWQ, 4)); VM.issue()
A("s_lshl_b32 s%d, s%d, 3" % (T0, sJ))
A("s_add_u32 s%d, s%d, s%d" % (T0, T0, sW))
A("s_mul_i32 s%d, s%d, 896" % (T0, T0))
A("s_mul_i32 s%d, s%d, %d" % (T1, sRB, 128 * 896))
A("s_add_u32 s%d, s%d, s%d" % (T0, T0, T1))
A("s_mov_b64 exec, 0x7f")
A("buffer_load_dword v172, v162, %s, s%d offen" % (s(SX, 4), T0)); VM.issue()
exec_all()
srd(SWS, 34, WS_SIZE)
srd(SDBG, 32, 256)
srd(SOUT, 30, 2048 * 896)
Ln = A.label()
A("s_cmp_lg_u32 s2, 0")
A("s_cbranch_scc1 %s" % Ln)
A("s_cmp_lg_u32 s%d, 7" % sW)
A("s_cbranch_scc1 %s" % Ln)
A("s_memrealtime s[12:13]")
A("s_waitcnt lgkmcnt(0)")
A("s_lshl_b64 s[12:13], s[12:13], 3")
A("s_or_b32 s13, s13, 0x80000000")
A("v_mov_b32 v%d, s12" % NON)
A("v_mov_b32 v%d, s13" % (NON + 1))
A("s_mov_b64 exec, 1")
A("buffer_store_dwordx2 %s, v%d, %s, 0 offen sc1" % (v(NON, 2), vL16, s(SDBG, 4)))
exec_all()
A.place(Ln)

A("s_lshl_b32 s%d, s%d, 8" % (T0, sW))
A("s_add_u32 s%d, s%d, s2" % (T0, T0))
A("s_cmp_lt_u32 s%d, 1176" % T0)
A("s_cselect_b32 s%d, 1, 0" % sHAS)
A("s_min_u32 s%d, s%d, 1175" % (T0, T0))
Lgu = A.label(); Lwd = A.label(); Lrp_done = A.label(); Lnwo = A.label()
A("s_mov_b32 s%d, 0" % sISWO)
A("s_mov_b32 s%d, 0x20000" % (SSRC + 3))
A("s_cmp_lg_u32 s%d, 5" % sW)
A("s_cbranch_scc1 %s" % Lnwo)
A("s_cmp_lt_u32 s2, 112")
A("s_cselect_b32 s%d, 1, 0" % sISWO)
A("s_min_u32 s%d, s2, 111" % T0)
A("s_mul_i32 s%d, s%d, 9363" % (T1, T0))
A("s_lshr_b32 s%d, s%d, 16" % (T1, T1))
A("s_mul_i32 s%d, s%d, 7" % (T2, T1))
A("s_sub_u32 s%d, s%d, s%d" % (T2, T0, T2))
A("s_mov_b32 s%d, s20\ns_mov_b32 s%d, s21\ns_mov_b32 s%d, %d" % (SSRC, SSRC + 1, SSRC + 2, 448 * 896))
A("s_mov_b32 s%d, 896" % sRPITCH)
A("s_mul_i32 s%d, s%d, %d" % (sRSRC, T1, 28 * 896))
A("s_lshl_b32 s%d, s%d, 7" % (T3, T2))
A("s_add_u32 s%d, s%d, s%d" % (sRSRC, sRSRC, T3))
A("s_lshl_b32 s%d, s%d, 16" % (sRDST, T2))
A("s_lshl_b32 s%d, s%d, 10" % (T3, T1))
A("s_add_u32 s%d, s%d, s%d" % (sRDST, sRDST, T3))
A("s_add_u32 s%d, s%d, 0x%x" % (sRDST, sRDST, WOF))
A("s_mov_b32 s%d, 16384" % sRSTR)
A("s_branch %s" % Lrp_done)
A.place(Lnwo)
A("s_cmp_lt_u32 s%d, 784" % T0)
A("s_cbranch_scc1 %s" % Lgu)
A("s_sub_u32 s%d, s%d, 784" % (T0, T0))
A("s_mul_i32 s%d, s%d, 9363" % (T1, T0))
A("s_lshr_b32 s%d, s%d, 16" % (T1, T1))
A("s_mul_i32 s%d, s%d, 7" % (T2, T1))
A("s_sub_u32 s%d, s%d, s%d" % (T2, T0, T2))
A("s_mov_b32 s%d, s28\ns_mov_b32 s%d, s29\ns_mov_b32 s%d, %d" % (SSRC, SSRC + 1, SSRC + 2, 1792 * 896))
A("s_mov_b32 s%d, 896" % sRPITCH)
A("s_mul_i32 s%d, s%d, %d" % (sRSRC, T1, 32 * 896))
A("s_lshl_b32 s%d, s%d, 7" % (T3, T2))
A("s_add_u32 s%d, s%d, s%d" % (sRSRC, sRSRC, T3))
A("s_mul_i32 s%d, s%d, %d" % (sRDST, T2, 4 * 57344))
A("s_lshl_b32 s%d, s%d, 10" % (T3, T1))
A("s_add_u32 s%d, s%d, s%d" % (sRDST, sRDST, T3))
A("s_add_u32 s%d, s%d, 0x%x" % (sRDST, sRDST, WDF))
A("s_mov_b32 s%d, 57344" % sRSTR)
A("s_branch %s" % Lrp_done)
A.place(Lgu)
A("s_cmp_ge_u32 s%d, 392" % T0)
A("s_cselect_b32 s%d, s26, s24" % SSRC)
A("s_cselect_b32 s%d, s27, s25" % (SSRC + 1))
A("s_cselect_b32 s%d, 392, 0" % T4)
A("s_cselect_b32 s%d, 1024, 0" % T5)
A("s_mov_b32 s%d, %d" % (SSRC + 2, 448 * 3584))
A("s_sub_u32 s%d, s%d, s%d" % (T0, T0, T4))
A("s_mul_i32 s%d, s%d, 2341" % (T1, T0))
A("s_lshr_b32 s%d, s%d, 16" % (T1, T1))
A("s_mul_i32 s%d, s%d, 28" % (T2, T1))
A("s_sub_u32 s%d, s%d, s%d" % (T2, T0, T2))
A("s_mov_b32 s%d, 3584" % sRPITCH)
A("s_mul_i32 s%d, s%d, %d" % (sRSRC, T1, 32 * 3584))
A("s_lshl_b32 s%d, s%d, 7" % (T3, T2))
A("s_add_u32 s%d, s%d, s%d" % (sRSRC, sRSRC, T3))
A("s_mul_i32 s%d, s%d, %d" % (sRDST, T2, 4 * 28672))
A("s_lshl_b32 s%d, s%d, 11" % (T3, T1))
A("s_add_u32 s%d, s%d, s%d" % (sRDST, sRDST, T3))
A("s_add_u32 s%d, s%d, s%d" % (sRDST, sRDST, T5))
A("s_add_u32 s%d, s%d, 0x%x" % (sRDST, sRDST, WGUF))
A("s_mov_b32 s%d, 28672" % sRSTR)
A.place(Lrp_done)

def rs_loads(RS, vt, track):
    A("v_lshrrev_b32 v%d, 3, v%d" % (vt, vL))
    A("v_mul_lo_u32 v%d, v%d, s%d" % (vt, vt, sRPITCH))
    A("v_and_b32 v%d, 7, v%d" % (vt + 1, vL))
    A("v_lshl_add_u32 v%d, v%d, 4, v%d" % (vt, vt + 1, vt))
    A("s_lshl_b32 s%d, s%d, 3" % (T1, sRPITCH))
    A("s_mov_b32 s%d, s%d" % (T0, sRSRC))
    for t in range(4):
        A("buffer_load_dwordx4 %s, v%d, %s, s%d offen" % (v(RS + 4 * t, 4), vt, s(SSRC, 4), T0))
        if track:
            VM.issue(("rs", t))
        if t < 3:
            A("s_add_u32 s%d, s%d, s%d" % (T0, T0, T1))
def repack_lds(RS, RO, iswo, va, vb):
    A("s_lshl_b32 s%d, s%d, 12" % (T2, sW))
    A("s_add_u32 s%d, s%d, %d" % (T2, T2, RSC))
    A("v_add_u32 v%d, s%d, v%d" % (va, T2, vL16))
    for t in range(4):
        A("ds_write_b128 v%d, %s offset:%d" % (va, v(RS + 4 * t, 4), t * 1024))
    A("v_lshlrev_b32 v%d, %d, v14" % (va, 9 if iswo else 10))
    A("v_lshrrev_b32 v%d, 2, v15" % vb)
    A("v_lshl_add_u32 v%d, v%d, 7, v%d" % (va, vb, va))
    A("v_and_b32 v%d, 3, v%d" % (vb, vL))
    A("v_lshl_add_u32 v%d, v%d, 3, v%d" % (va, vb, va))
    A("v_add_u32 v%d, s%d, v%d" % (va, T2, va))
    hoff = 2048 if iswo else 512
    for t4 in range(4):
        A("ds_read_b64_tr_b16 %s, v%d offset:%d" % (v(RO + 4 * t4, 2), va, t4 * 32))
        A("ds_read_b64_tr_b16 %s, v%d offset:%d" % (v(RO + 4 * t4 + 2, 2), va, hoff + t4 * 32))
    A("s_waitcnt lgkmcnt(0)")
    if iswo:
        set_exec(0, 0xFFFF0000)
        for t4 in range(4):
            A("v_mov_b32 v%d, 0\nv_mov_b32 v%d, 0" % (RO + 4 * t4 + 2, RO + 4 * t4 + 3))
        exec_all()
def repack_stores(RO, sdst, track):
    A("s_mov_b32 s%d, s%d" % (T0, sdst))
    for t4 in range(4):
        A("buffer_store_dwordx4 %s, v%d, %s, s%d offen sc1" % (v(RO + 4 * t4, 4), vL16, s(SWS, 4), T0))
        if track:
            VM.issue()
        if t4 < 3:
            A("s_add_u32 s%d, s%d, s%d" % (T0, T0, sRSTR))
RS1, RO1 = 56, 180
A("s_or_b32 s%d, s%d, s%d" % (T0, sHAS, sISWO))
A("s_cmp_eq_u32 s%d, 0" % T0)
A("s_cselect_b32 s%d, 0x10000000, s%d" % (sRSRC, sRSRC))
A("s_cselect_b32 s%d, 0x%x, s%d" % (sRDST, OOB, sRDST))
barrier()
stamp("p1", "coop issued")

sXO, sXL, sWG_, sWL_, sWH = 11, 14, 15, 69, 68
A("s_lshl_b32 s%d, s%d, 7" % (T0, sRB))
A("s_lshl_b32 s%d, s%d, 4" % (T1, sW))
A("s_add_u32 s%d, s%d, s%d" % (T0, T0, T1))
A("s_mul_i32 s%d, s%d, 896" % (sXO, T0))
A("s_mul_i32 s%d, s%d, 6144" % (sXL, sW))
A("s_add_u32 s%d, s%d, %d" % (sXL, sXL, XST))
A("s_mul_i32 s%d, s%d, 56" % (sWH, sJ))
A("s_lshr_b32 s%d, s%d, 1" % (T0, sW))
A("s_mul_i32 s%d, s%d, 43008" % (T0, T0))
A("s_and_b32 s%d, s%d, 1" % (T1, sW))
A("s_add_u32 s%d, s%d, 1" % (T1, T1))
A("s_mul_i32 s%d, s%d, 896" % (T1, T1))
A("s_add_u32 s%d, s%d, s%d" % (T0, T0, T1))
A("s_add_u32 s%d, s%d, s%d" % (sWG_, sWH, T0))
A("s_lshl_b32 s%d, s%d, 10" % (sWL_, sW))
def w_dma(c):
    A("s_add_u32 m0, s%d, %d" % (sWL_, c * 8192))
    A("s_add_u32 s%d, s%d, %d" % (T2, sWG_, c * 4 * 43008))
    A("buffer_load_dwordx4 v7, %s, s%d offen lds" % (s(SWQ, 4), T2)); VM.issue()
def wq_dma(i):
    A("s_add_u32 s%d, s%d, %d" % (T0, sW, 8 * i))
    if i == 3:
        A("s_min_u32 s%d, s%d, 27" % (T0, T0))
    A("s_mul_i32 s%d, s%d, 43008" % (T2, T0))
    A("s_lshl_b32 s%d, s%d, 10" % (T0, T0))
    A("s_add_u32 m0, s%d, %d" % (T0, WQL))
    A("s_add_u32 s%d, s%d, s%d" % (T2, T2, sWH))
    A("buffer_load_dwordx4 v7, %s, s%d offen lds" % (s(SWQ, 4), T2)); VM.issue()
def x_load(c):
    for hh in range(2):
        A("s_add_u32 m0, s%d, %d" % (sXL, (c % 3) * 2048 + hh * 1024))
        A("s_add_u32 s%d, s%d, %d" % (T0, sXO, c * 128))
        A("buffer_load_dwordx4 v%d, %s, s%d offen lds" % (3 + hh, s(SX, 4), T0))
        VM.issue(("x", c) if hh == 1 else None)
def chunk_loads(c):
    w_dma(c)
    x_load(c)

A("v_lshrrev_b32 v5, 1, v15")
A("v_xor_b32 v5, v5, v14")
A("v_lshrrev_b32 v6, 3, v15")
A("v_lshlrev_b32 v6, 10, v6")
A("v_and_b32 v8, 7, v15")
A("v_lshl_add_u32 v6, v8, 7, v6")
A("v_add_u32 v6, s%d, v6" % sXL)
A("v_xor_b32 v8, 4, v5")
A("v_lshl_add_u32 v5, v5, 4, v6")
A("v_lshl_add_u32 v6, v8, 4, v6")
A("v_lshrrev_b32 v8, 1, v14")
A("v_lshlrev_b32 v8, 11, v8")
A("v_and_b32 v9, 1, v14")
A("v_lshrrev_b32 v10, 2, v15")
A("v_lshl_add_u32 v10, v9, 3, v10")
A("v_lshl_add_u32 v8, v10, 6, v8")
A("v_and_b32 v10, 3, v%d" % vL)
A("v_lshl_add_u32 v8, v10, 3, v8")
A("v_lshl_add_u32 v10, v9, 5, v8")
A("v_xor_b32 v9, 1, v9")
A("v_lshl_add_u32 v9, v9, 5, v8")
A("v_mov_b32 v8, v10")
sTT = 3
A("s_and_b32 s%d, s%d, 3" % (sTT, sW))
A("s_lshr_b32 s%d, s%d, 1" % (T1, sTT))
A("s_lshl_b32 s%d, s%d, 10" % (T1, T1))
A("s_and_b32 s%d, s%d, 1" % (T2, sTT))
A("s_cmp_eq_u32 s%d, 1" % T2)
A("s_cselect_b64 s[12:13], -1, 0")
A("v_cndmask_b32 v10, v8, v9, s[12:13]")
A("v_add_u32 v10, s%d, v10" % T1)
for i in range(4):
    A("v_mov_b32 v%d, 0x3f803f80" % (ONES + i))
for (r, lo, hi) in ((M1, 0x22222222, 0x22222222), (M2, 0x44444444, 0x44444444), (M3, 0x88888888, 0x88888888), (MD, 0x00F0000F, 0xF0000F00)):
    A("s_mov_b32 s%d, 0x%x\ns_mov_b32 s%d, 0x%x" % (r, lo, r + 1, hi))
A("v_mov_b32 v11, %d" % LFLAG)
for i in range(4):
    A("v_mov_b32 v%d, 0" % (32 + i))
A("ds_write_b128 v11, v[32:35]"); LG.issue()
A("ds_write_b128 v11, v[32:35] offset:16"); LG.issue()
A("s_and_b32 s%d, s%d, 3" % (T0, sJ))
A("s_mul_i32 s%d, s%d, 7" % (sNT, T0))
A("s_add_u32 s%d, s%d, s%d" % (sNT, sNT, sW))
A("s_lshr_b32 s%d, s%d, 2" % (T0, sJ))
A("s_lshl_b32 s%d, s%d, 3" % (sMT3, sRB))
A("s_add_u32 s%d, s%d, s%d" % (sMT3, sMT3, T0))
A("s_mul_i32 s%d, s%d, 7" % (sFT, sJ))
A("s_add_u32 s%d, s%d, s%d" % (sFT, sFT, sW))
A("s_lshl_b32 s%d, s%d, 14" % (sWO, sNT))
A("s_add_u32 s%d, s%d, 0x%x" % (sWO, sWO, WOF))
A("s_mul_i32 s%d, s%d, 28672" % (sWGU, sFT))
A("s_add_u32 s%d, s%d, 0x%x" % (sWGU, sWGU, WGUF))
A("s_mul_i32 s%d, s%d, 57344" % (sWD, sNT))
A("s_add_u32 s%d, s%d, 0x%x" % (sWD, sWD, WDF))
A("s_and_b32 s%d, s%d, 1" % (T0, sRB))
A("s_lshl_b32 s%d, s%d, 2" % (sR8, T0))
A("s_lshr_b32 s%d, s%d, 2" % (T1, sJ))
A("s_add_u32 s%d, s%d, s%d" % (sR8, sR8, T1))
A("s_mul_i32 s%d, s%d, 7" % (sRG, T0))
A("s_add_u32 s%d, s%d, s%d" % (sRG, sRG, sJ))
for _ in range(2):
    A("s_cmp_ge_u32 s%d, 14" % sRG)
    A("s_cselect_b32 s%d, 14, 0" % T1)
    A("s_sub_u32 s%d, s%d, s%d" % (sRG, sRG, T1))
if opt("rot", "1") == "0":
    A("s_mov_b32 s%d, 0\ns_mov_b32 s%d, 0" % (sR8, sRG))
A("s_lshl_b32 s%d, s%d, 11" % (sROo, sR8))
A("s_lshl_b32 s%d, s%d, 1" % (T0, sR8))
A("s_sub_u32 s%d, 16, s%d" % (sTHo, T0))
A("s_lshl_b32 s%d, s%d, 10" % (sROg, sRG))
A("s_sub_u32 s%d, 14, s%d" % (sTHg, sRG))
A("s_mul_i32 s%d, s%d, 7168" % (sROd, sR8))
A("s_mul_i32 s%d, s%d, 7" % (T0, sR8))
A("s_sub_u32 s%d, 56, s%d" % (sTHd, T0))
A("s_add_u32 s%d, s%d, s%d" % (sWO, sWO, sROo))
A("s_add_u32 s%d, s%d, s%d" % (sWGU, sWGU, sROg))
A("s_add_u32 s%d, s%d, s%d" % (sWGU, sWGU, sROg))
A("s_add_u32 s%d, s%d, s%d" % (sWD, sWD, sROd))
chunk_loads(0)
barrier()
chunk_loads(1)
L7 = if_wave(7)
A("v_mov_b32 v12, 0")
A("buffer_load_dwordx2 %s, v12, %s, 0 offen sc1" % (v(NON, 2), s(SDBG, 4)))
A.place(L7)
stamp("p1", "issued")

ACC = 72
GR, RSUM, CSA = 96, 100, 104
XP = 196
WF = 116
def p1_reads_x(ks):
    c, e = ks >> 1, ks & 1
    A("ds_read_b128 %s, v%d offset:%d" % (v(XP + 4 * ks, 4), 5 + e, (c % 3) * 2048)); LG.issue(("x", ks))
def p1_reads_w(ks, f):
    d = WF + (ks & 1) * 20 + f * 4
    if f < 4:
        va, off = 8 + (f & 1), ks * 4096 + (f >> 1) * 1024
    else:
        va, off = 10, ks * 4096
    A("ds_read_b64_tr_b16 %s, v%d offset:%d" % (v(d, 2), va, off)); LG.issue()
    A("ds_read_b64_tr_b16 %s, v%d offset:%d" % (v(d + 2, 2), va, off + 256)); LG.issue(("w", ks, f))
def p1_mfma_x(ks):
    xf = XP + 4 * ks
    LG.wait(("x", ks))
    mfma(GR, xf, xf, None if ks == 0 else GR)
    mfma(RSUM, ONES, xf, None if ks == 0 else RSUM)
def p1_mfma_w(ks, f):
    xf = XP + 4 * ks
    wf = WF + (ks & 1) * 20 + f * 4
    LG.wait(("w", ks, f))
    ac = ACC + 8 + 4 * f
    if f < 2:
        mfma(ac, wf, xf, None if ks == 0 else ac)
    elif f < 4:
        mfma(ac, xf, wf, None if ks == 0 else ac)
    else:
        mfma(CSA, ONES, wf, None if ks == 0 else CSA)
def chunk_gate(c):
    VM.wait(("x", c))
    barrier()
    stamp("p1", "chunk %d barrier" % c)
chunk_gate(0)
p1_reads_x(0)
for f in range(5):
    p1_reads_w(0, f)
LOADAT = {0: 2, 1: 3, 3: 4, 5: 5, 7: 6}
for ks in range(14):
    nk = ks + 1
    if nk < 14 and nk % 2 == 0:
        chunk_gate(nk >> 1)
    p1_mfma_x(ks)
    if nk < 14:
        p1_reads_x(nk)
    for f in range(5):
        p1_mfma_w(ks, f)
        if nk < 14:
            p1_reads_w(nk, f)
        if ks in LOADAT:
            if f == 0:
                w_dma(LOADAT[ks])
            if f == 2:
                x_load(LOADAT[ks])
    if ks == 4:
        LG.wait_all()
        L7 = if_wave(7)
        Lp = A.label(); Ld = A.label()
        A("s_mov_b32 s%d, 0" % sSPIN)
        A("v_cmp_ne_u32 vcc, 0, v%d" % (NON + 1))
        A("s_cbranch_vccnz %s" % Ld)
        A.place(Lp)
        A("buffer_load_dwordx2 %s, v12, %s, 0 offen sc1" % (v(NON, 2), s(SDBG, 4)))
        A("s_add_u32 s%d, s%d, 1" % (sSPIN, sSPIN))
        A("s_cmp_gt_u32 s%d, 0x40000" % sSPIN)
        A("s_waitcnt vmcnt(0)")
        A("s_cbranch_scc1 %s" % Ld)
        A("v_cmp_eq_u32 vcc, 0, v%d" % (NON + 1))
        A("s_cbranch_vccnz %s" % Lp)
        A.place(Ld)
        A("ds_write_b64 v11, %s offset:24" % v(NON, 2))
        A("v_or_b32 v%d, s%d, v%d" % (PT, sXCC, NON))
        A("v_mov_b32 v%d, v%d" % (PT + 1, NON + 1))
        A("s_lshl_b32 s%d, s%d, 3" % (T0, sSLOT))
        A("s_add_u32 s%d, s%d, 0x%x" % (T0, T0, FL_HELLO))
        A("s_mov_b64 exec, 1")
        A("buffer_store_dwordx2 %s, %s, %s, s%d offen sc1" % (v(PT, 2), v(vL16), s(SWS, 4), T0))
        exec_all()
        A("s_waitcnt lgkmcnt(0)")
        A.place(L7)
    WARMAT = {int(x): i for i, x in enumerate(opt("warmat", "0,2,4").split(","))}
    if ks in WARMAT:
        Lw = A.label()
        A("s_lshr_b32 s%d, s%d, 1" % (T0, sW))
        A("s_cmp_lg_u32 s%d, %d" % (T0, WARMAT[ks]))
        A("s_cbranch_scc1 %s" % Lw)
        A("v_mul_lo_u32 v178, v%d, s%d" % (vL, sRPITCH))
        set_exec(0xffffffff, 0)
        A("buffer_load_dword v172, v178, %s, s%d offen" % (s(SSRC, 4), sRSRC))
        exec_all()
        A.place(Lw)
    if ks == int(opt("qwarm", "6")):
        A("s_mov_b64 exec, 0xffff")
        A("buffer_load_dword v172, v161, %s, 0 offen" % s(SWQ, 4)); VM.issue()
        exec_all()
    if ks == 9:
        A("ds_read_b64 %s, v11 offset:24" % v(NON, 2)); LG.issue()
    if ks == 10:
        rs_loads(RS1, 178, True)
    if ks == 12:
        for i in range(4):
            wq_dma(i)
stamp("main", "p1 loop end")
A("s_lshl_b32 s%d, s%d, 6" % (T0, sTT))
A("s_add_u32 s%d, s%d, %d" % (T0, T0, CSB + 128))
A("v_lshl_add_u32 v3, v15, 2, s%d" % T0)
A("ds_write_b32 v3, v%d" % CSA); LG.issue()
A("v_cndmask_b32 v4, v%d, v%d, s[%d:%d]" % (GR, GR + 1, M1, M1 + 1))
A("v_cndmask_b32 v4, v4, v%d, s[%d:%d]" % (GR + 2, M2, M2 + 1))
A("v_cndmask_b32 v4, v4, v%d, s[%d:%d]" % (GR + 3, M3, M3 + 1))
A("v_mul_f32 v5, %s, v%d" % (f32(1.0 / 448), RSUM))
A("v_mul_f32 v6, %s, v4" % f32(1.0 / 448))
A("v_fma_f32 v6, -v5, v5, v6")
A("v_max_f32 v6, 0, v6")
A("v_add_f32 v6, %s, v6" % f32(1e-5))
A("v_rsq_f32 v6, v6")
A("v_mov_b32 v32, v6")
A("v_mul_f32_e64 v33, -v5, v6")
A("s_lshl_b32 s%d, s%d, 7" % (T0, sW))
A("s_add_u32 s%d, s%d, %d" % (T0, T0, TBL))
A("v_lshl_add_u32 v3, v15, 3, s%d" % T0)
A("s_mov_b64 exec, s[%d:%d]" % (MD, MD + 1))
A("ds_write_b64 v3, v[32:33]"); LG.issue()
exec_all()
A("v_lshl_add_u32 v4, v14, 5, s%d" % T0)
ST = 108
A("ds_read_b64 %s, v3" % v(ST, 2)); LG.issue()
A("ds_read_b128 %s, v4" % v(ST + 4, 4)); LG.issue()
A("ds_read_b128 %s, v4 offset:16" % v(ST + 8, 4)); LG.issue()
LG.wait_all()
barrier()
CSV = 120
A("v_lshlrev_b32 v3, 4, v14")
A("v_add_u32 v3, %d, v3" % CSB)
for t in (2, 3):
    A("ds_read_b128 %s, v3 offset:%d" % (v(CSV + 4 * t, 4), 64 * t)); LG.issue()
A("v_lshlrev_b32 v4, 2, v15")
A("v_add_u32 v4, %d, v4" % CSB)
for dt in range(2):
    A("ds_read_b32 v%d, v4 offset:%d" % (CSV + 16 + dt, 256 + 64 * dt)); LG.issue()
qs = (28 ** -0.5) * math.log2(math.e)
RQ = 34
A("v_mul_f32 v%d, %s, v%d" % (RQ, f32(qs), ST))
A("v_mul_f32 v%d, %s, v%d" % (RQ + 1, f32(qs), ST + 1))
sKV = 11
A("s_lshl_b32 s%d, s%d, 14" % (sKV, sSLOT))
A("s_lshl_b32 s%d, s%d, 10" % (T1, sW))
A("s_add_u32 s%d, s%d, s%d" % (sKV, sKV, T1))
A("s_add_u32 s%d, s%d, 0x%x" % (sKV, sKV, KVB))
A("s_lshr_b32 s%d, s%d, 1" % (T2, sW))
A("s_lshl_b32 s%d, s%d, 11" % (T2, T2))
A("s_and_b32 s%d, s%d, 1" % (T3, sW))
A("s_lshl_b32 s%d, s%d, 3" % (T3, T3))
A("s_add_u32 s%d, s%d, s%d" % (T2, T2, T3))
LG.wait_all()
KFR, VFR = 140, 144
for dt in range(2):
    for r in range(4):
        A("v_mul_f32 v3, v%d, v%d" % (CSV + 16 + dt, ST + 4 + 2 * r + 1))
        A("v_fma_f32 v%d, v%d, v%d, v3" % (ACC + 16 + 4 * dt + r, ACC + 16 + 4 * dt + r, ST + 4 + 2 * r))
for i in range(4):
    A("v_cvt_pk_bf16_f32 v%d, v%d, v%d" % (VFR + i, ACC + 16 + 2 * i, ACC + 16 + 2 * i + 1))
set_exec(0x10001000, 0x10001000)
A("v_mov_b32 v%d, 0x3f803f80\nv_mov_b32 v%d, 0x3f803f80" % (VFR + 2, VFR + 3))
set_exec(0xE000E000, 0xE000E000)
A("v_mov_b32 v%d, 0\nv_mov_b32 v%d, 0" % (VFR + 2, VFR + 3))
exec_all()
A("v_add_u32 v4, s%d, v%d" % (T2, vL16))
A("ds_write_b64 v4, %s offset:%d" % (v(VFR, 2), VREG + 16384)); LG.issue()
A("ds_write_b64 v4, %s offset:%d" % (v(VFR + 2, 2), VREG + 16384 + 1024)); LG.issue()
for t in (2, 3):
    for r in range(4):
        A("v_mul_f32 v%d, v%d, v%d" % (CSV + 4 * t + r, CSV + 4 * t + r, ST + 1))
        A("v_fma_f32 v%d, v%d, v%d, v%d" % (ACC + 4 * t + r, ACC + 4 * t + r, ST, CSV + 4 * t + r))
for i in range(4):
    A("v_cvt_pk_bf16_f32 v%d, v%d, v%d" % (KFR + i, ACC + 8 + 2 * i, ACC + 8 + 2 * i + 1))
set_exec(0, 0xFFFF0000)
for r in (KFR + 2, KFR + 3):
    A("v_mov_b32 v%d, 0" % r)
exec_all()
A("buffer_store_dwordx4 %s, v%d, %s, s%d offen sc1" % (v(KFR, 4), vL16, s(SWS, 4), sKV)); VM.issue()
A("v_add_u32 v3, s%d, v%d" % (T1, vL16))
LG.wait_all()
barrier()
A("ds_read_b128 %s, v3 offset:%d" % (v(148, 4), VREG + 16384)); LG.issue()
A("ds_write_b128 v3, %s offset:%d" % (v(KFR, 4), 16384)); LG.issue()
A("s_add_u32 s%d, s%d, 8192" % (sKV, sKV))
A("s_waitcnt lgkmcnt(1)")
A("buffer_store_dwordx4 %s, v%d, %s, s%d offen sc1" % (v(148, 4), vL16, s(SWS, 4), sKV)); VM.issue()
A("s_lshl_b32 s%d, s%d, 4" % (T0, sRB))
A("v_add_u32 v%d, s%d, v%d" % (vPOLL, T0, vL))
A("s_sub_i32 s%d, s%d, 16" % (T1, sSLOT))
A("s_max_i32 s%d, s%d, 0" % (T1, T1))
A("s_sub_i32 s%d, s%d, 32" % (T2, sSLOT))
A("s_cmp_lt_i32 s%d, 0" % T2)
A("s_cselect_b32 s%d, s%d, s%d" % (T2, T1, T2))
A("v_writelane_b32 v%d, s%d, 16" % (vPOLL, T1))
A("v_writelane_b32 v%d, s%d, 17" % (vPOLL, T2))
A("v_and_b32 v%d, 255, v%d" % (vPOLL, vPOLL))
L7 = if_wave(7)
A("v_lshlrev_b32 v3, 3, v%d" % vPOLL)
A("s_mov_b32 s%d, 0x%x" % (T0, FL_HELLO))
A("buffer_load_dwordx2 %s, v3, %s, s%d offen sc1" % (v(PT, 2), s(SWS, 4), T0))
A.place(L7)
LG.wait_all()
VM.wait(("rs", 3))
Lx = A.label(); Ly = A.label()
A("s_cmp_eq_u32 s%d, 0" % sHAS)
A("s_cbranch_scc1 %s" % Lx)
repack_lds(RS1, RO1, False, 178, 179)
A.place(Lx)
A("s_cmp_eq_u32 s%d, 0" % sISWO)
A("s_cbranch_scc1 %s" % Ly)
repack_lds(RS1, RO1, True, 178, 179)
A.place(Ly)
repack_stores(RO1, sRDST, True)
BIAS = 156
A("s_and_b32 s%d, s%d, 1" % (T1, sW))
A("s_lshl_b32 s%d, s%d, 4" % (T1, T1))
A("v_lshlrev_b32 v4, 2, v14")
A("v_sub_u32 v4, v15, v4")
A("v_add_u32 v4, s%d, v4" % T1)
A("v_mov_b32 v5, 0xff800000")
A("v_mov_b32 v6, 0")
items = [(BIAS + 4 * k + r, "v_cmp_gt_i32", 16 * k + r) for k in (0, 1) for r in range(4)] + \
        [(BIAS + 8 + 4 * k + r, "v_cmp_le_i32", 16 * k + r) for k in (0, 1) for r in range(4)]
for k in range(0, 16, 4):
    grp = items[k:k + 4]
    for (q, (reg, op, cst)) in enumerate(grp):
        A("%s s[%d:%d], %d, v4" % (op, MS[q], MS[q] + 1, cst))
    for (q, (reg, op, cst)) in enumerate(grp):
        A("v_cndmask_b32 v%d, v5, v6, s[%d:%d]" % (reg, MS[q], MS[q] + 1))
A("v_lshrrev_b32 v3, 1, v14")
A("v_lshlrev_b32 v3, 10, v3")
A("v_sub_u32 v3, %d, v3" % WQL)
A("v_add_u32 v8, v8, v3")
A("v_add_u32 v9, v9, v3")
A("s_and_b32 s%d, s%d, 1" % (sTT, sW))
A("s_cmp_eq_u32 s%d, 1" % sTT)
A("s_cselect_b64 s[12:13], -1, 0")
A("v_cndmask_b32 v10, v8, v9, s[12:13]")
VM.wait_all()
LG.wait_all()
barrier()
flag_stores(FL_KV)
L4 = if_wave(4)
packed_flag(FL_RP1)
A.place(L4)
stamp("main", "kv flag")
QW, CSQ = 104, 140
def q_read(ks):
    for f in range(3):
        d = QW + (ks % 3) * 12 + 4 * f
        A("ds_read_b64_tr_b16 %s, v%d offset:%d" % (v(d, 2), 8 + f, ks * 2048)); LG.issue()
        A("ds_read_b64_tr_b16 %s, v%d offset:%d" % (v(d + 2, 2), 8 + f, ks * 2048 + 256)); LG.issue(("q", ks, f))
q_read(0); q_read(1)
for ks in range(14):
    for f in range(3):
        d = QW + (ks % 3) * 12 + 4 * f
        LG.wait(("q", ks, f))
        if f < 2:
            mfma(ACC + 4 * f, d, XP + 4 * ks, None if ks == 0 else ACC + 4 * f)
        else:
            mfma(CSQ, ONES, d, None if ks == 0 else CSQ)
    if ks + 2 < 14:
        q_read(ks + 2)
A("s_lshl_b32 s%d, s%d, 6" % (T0, sTT))
A("s_add_u32 s%d, s%d, %d" % (T0, T0, CSB))
A("v_lshl_add_u32 v3, v15, 2, s%d" % T0)
A("ds_write_b32 v3, v%d" % CSQ); LG.issue()
LG.wait_all()
stamp("main", "q pass done")
L7 = if_wave(7)
A("v_or_b32 v36, s%d, v%d" % (sXCC, NON))
A("v_mov_b32 v37, v%d" % (NON + 1))
A("v_cmp_eq_u64 vcc, %s, v[36:37]" % v(PT, 2))
A("v_lshlrev_b32 v%d, 7, v%d" % (vPOLL, vPOLL))
A("v_mov_b32 v32, 0x%x" % FASTOFF)
A("v_cndmask_b32 v32, 0, v32, vcc")
A("v_or_b32 v%d, v%d, v32" % (vPOLL, vPOLL))
Lsk = A.label()
A("s_cmp_eq_u32 s%d, 0" % sRB)
A("s_cbranch_scc1 %s" % Lsk)
A("s_cmp_eq_u32 s%d, 1" % sRB)
A("s_cselect_b32 s%d, 1, 3" % T1)
A("s_lshl_b32 s%d, s%d, 16" % (T1, T1))
A("s_mov_b32 exec_hi, 0")
A("s_mov_b32 exec_lo, s%d" % T1)
poll_flags(FL_KV)
A.place(Lsk)
A.place(L7)
A("s_lshr_b32 s%d, s%d, 2" % (T0, sW))
A("s_and_b32 s%d, s%d, 3" % (T1, sW))
A("s_add_u32 s%d, s%d, s%d" % (T2, sRB, T0))
A("s_lshl_b32 s%d, s%d, 4" % (T3, T0))
A("s_add_u32 s%d, s%d, s%d" % (T3, T3, sSLOT))
A("s_sub_u32 s%d, s%d, 32" % (T3, T3))
A("s_lshl_b32 s%d, s%d, 14" % (T3, T3))
A("s_lshl_b32 s%d, s%d, 12" % (T4, T1))
A("s_add_u32 s%d, s%d, s%d" % (T3, T3, T4))
A("s_add_u32 s%d, s%d, 0x%x" % (T3, T3, KVB))
A("s_cmp_lt_u32 s%d, 2" % T2)
A("s_cselect_b32 s%d, 0x%x, s%d" % (T3, WS_SIZE, T3))
A("s_lshl_b32 s%d, s%d, 13" % (T4, T0))
A("s_and_b32 s%d, s%d, 1" % (T5, T1))
A("s_lshl_b32 s%d, s%d, 12" % (T5, T5))
A("s_add_u32 s%d, s%d, s%d" % (T4, T4, T5))
A("s_cmp_ge_u32 s%d, 2" % T1)
A("s_cselect_b32 s%d, %d, 0" % (T5, VREG))
A("s_add_u32 m0, s%d, s%d" % (T4, T5))
barrier()
for i in range(4):
    A("buffer_load_dwordx4 v%d, %s, s%d offen offset:%d sc1 lds" % (vL16, s(SWS, 4), T3, i * 1024)); VM.issue()
stamp("main", "A")
A("v_lshlrev_b32 v3, 4, v14")
A("v_add_u32 v3, %d, v3" % CSB)
for t in range(2):
    A("ds_read_b128 %s, v3 offset:%d" % (v(CSV + 4 * t, 4), 64 * t)); LG.issue()
LG.wait_all()
for t in (0, 1):
    for r in range(4):
        A("v_mul_f32 v%d, v%d, v%d" % (CSV + 4 * t + r, CSV + 4 * t + r, RQ + 1))
        A("v_fma_f32 v%d, v%d, v%d, v%d" % (ACC + 4 * t + r, ACC + 4 * t + r, RQ, CSV + 4 * t + r))
for i in range(4):
    A("v_cvt_pk_bf16_f32 v%d, v%d, v%d" % (QF + i, ACC + 2 * i, ACC + 2 * i + 1))
set_exec(0, 0xFFFF0000)
for r in (QF + 2, QF + 3):
    A("v_mov_b32 v%d, 0" % r)
exec_all()
for i in range(16):
    A("v_mov_b32 v%d, v%d" % (240 + i, BIAS + i))
BIAS = 240
L7 = if_wave(7)
rp_publish(FL_RP1, 40, 0)
A.place(L7)
A("s_lshr_b32 s%d, s%d, 1" % (T0, sW))
A("s_lshl_b32 s%d, s%d, 11" % (T0, T0))
A("v_add_u32 v3, s%d, v%d" % (T0, vL16))
VM.wait_all()
barrier()
stamp("main", "B")
A("ds_read_b32 v12, v11"); LG.issue("rpok")

def rot_addr(dst, sbase, kind, slot):
    th, k, wrap = {"o": (sTHo, slot, 16384), "g": (sTHg, slot >> 1, 28672), "d": (sTHd, slot, 57344)}[kind]
    A("s_cmp_gt_u32 s%d, %d" % (th, k))
    A("s_cselect_b32 s%d, 0, %d" % (dst, wrap))
    A("s_sub_u32 s%d, s%d, s%d" % (dst, sbase, dst))
def wload(reg, kind, sbase, frag, tag=None):
    rot_addr(T5, sbase, kind, frag)
    if frag >= 4:
        A("s_add_u32 s%d, s%d, %d" % (T5, T5, (frag // 4) * 4096))
    A("buffer_load_dwordx4 %s, v%d, %s, s%d offen offset:%d sc1" % (v(reg, 4), vL16, s(SWS, 4), T5, (frag % 4) * 1024)); VM.issue(tag)
WOR, WGR, CS4, FR = 176, 64, 240, 32
ACP = [176, 208]
sWE, sWE2 = 20, 3
NE = 6
early = [(WOR + 4 * hd, "o", sWE, hd) for hd in range(16)] + [(WGR + 4 * fr, "g", sWE2, fr) for fr in range(NE)]
def early_some(n):
    for _ in range(n):
        if early:
            wload(*early.pop(0))

SS, OO, RS2 = 104, 32, 64
WIN = [40, 44, 48, 52, 56, 60, 88, 92, 96, 100]
NWIN = len(WIN)
seq = [("k", i) for i in range(18)] + [("v", i) for i in range(18)]
def kv_read(n):
    kind, i = seq[n]
    off = i * 1024 + (VREG if kind == "v" else 0)
    A("ds_read_b128 %s, v3 offset:%d" % (v(WIN[n % NWIN], 4), off)); LG.issue((kind, i))
for n in range(NWIN):
    kv_read(n)
LG.wait("rpok")
A("v_readfirstlane_b32 s%d, v12" % sRPOK)
A("s_cmp_lg_u32 s%d, 7" % sW)
A("s_cselect_b32 s%d, s%d, 0" % (T0, sRPOK))
A("s_cmp_lg_u32 s%d, 0" % T0)
A("s_cselect_b32 s%d, s%d, 0x%x" % (sWE, sWO, OOB))
A("s_cselect_b32 s%d, s%d, 0x%x" % (sWE2, sWGU, OOB))
for i in range(18):
    LG.wait(("k", i))
    cb = {0: BIAS, 1: BIAS + 4, 16: BIAS + 8, 17: BIAS + 12}.get(i)
    mfma(SS + 4 * i, WIN[i % NWIN], QF, cb)
    kv_read(i + NWIN)
    if i % 6 == 5:
        early_some(1)
stamp("p2", "qk issued")
A("v_mul_u32_u24 v12, 896, v15")
A("v_lshl_add_u32 v12, v14, 3, v12")
A("s_mul_i32 s%d, s%d, %d" % (T0, sMT3, 16 * 896))
A("s_lshl_b32 s%d, s%d, 5" % (T1, sNT))
A("s_add_u32 s%d, s%d, s%d" % (T0, T0, T1))
A("buffer_load_dwordx2 %s, v12, %s, s%d offen" % (v(XRES, 2), s(SX, 4), T0)); VM.issue()
A("s_add_u32 s%d, s%d, %d" % (T0, T0, 64 * 896))
A("buffer_load_dwordx2 %s, v12, %s, s%d offen" % (v(XRES + 2, 2), s(SX, 4), T0)); VM.issue()
Lneg = A.label()
A("s_cmp_ge_u32 s%d, 2" % sRB)
A("s_cbranch_scc1 %s" % Lneg)
A("s_lshl_b32 s%d, s%d, 3" % (T0, sRB))
A("s_sub_u32 s%d, 16, s%d" % (T0, T0))
A("s_and_b32 s%d, s%d, 6" % (T1, sW))
A("s_sub_u32 s%d, s%d, s%d" % (T0, T0, T1))
for sl in range(16):
    A("s_cmp_gt_i32 s%d, %d" % (T0, sl))
    A("s_cbranch_scc0 %s" % Lneg)
    for r in range(4):
        A("v_mov_b32 v%d, v5" % (SS + 4 * sl + r))
A.place(Lneg)
A("v_max3_f32 v6, v%d, v%d, v%d" % (SS, SS + 1, SS + 2))
A("v_max3_f32 v7, v%d, v%d, v%d" % (SS + 3, SS + 4, SS + 5))
for i in range(6, 72, 4):
    A("v_max3_f32 v6, v6, v%d, v%d" % (SS + i, SS + i + 1))
    if i + 3 < 72:
        A("v_max3_f32 v7, v7, v%d, v%d" % (SS + i + 2, SS + i + 3))
    if i % 24 == 6:
        early_some(1)
A("v_max_f32 v6, v6, v7")
A("v_mov_b32 v7, v6")
A("v_permlane32_swap_b32 v6, v7")
A("v_max_f32 v6, v6, v7")
A("v_mov_b32 v7, v6")
A("v_permlane16_swap_b32 v6, v7")
A("v_max_f32 v6, v6, v7")
stamp("p2", "max done")
for p in range(9):
    b = SS + 8 * p
    for i in range(8):
        A("v_sub_f32 v%d, v%d, v6" % (b + i, b + i))
    for i in range(8):
        A("v_exp_f32 v%d, v%d" % (b + i, b + i))
        if i in (2, 6) and p < 8:
            early_some(1)
    for i in range(4):
        A("v_cvt_pk_bf16_f32 v%d, v%d, v%d" % (b + i, b + 2 * i, b + 2 * i + 1))
    for dt in range(2):
        n = 18 + 2 * p + dt
        LG.wait(("v", 2 * p + dt))
        mfma(OO + 4 * dt, WIN[n % NWIN], b, None if p == 0 else OO + 4 * dt)
        if n + NWIN < 36:
            kv_read(n + NWIN)
assert not early
stamp("p2", "pv issued")
A("s_lshl_b32 s%d, s%d, 3" % (T0, sRB))
A("s_add_u32 s%d, s%d, s%d" % (T0, T0, sW))
A("s_lshl_b32 s%d, s%d, 4" % (T0, T0))
A("s_add_u32 s%d, s%d, s%d" % (T0, T0, sJ))
A("s_lshl_b32 s%d, s%d, 10" % (T0, T0))
A("s_add_u32 s%d, s%d, 0x%x" % (T0, T0, OFB))
A("v_mov_b32 v6, v%d" % (OO + 4))
A("v_mov_b32 v7, v6")
A("v_permlane32_swap_b32 v6, v7")
A("v_mov_b32 v6, v7")
A("v_permlane16_swap_b32 v7, v6")
A("v_rcp_f32 v6, v6")
for i in range(8):
    A("v_mul_f32 v%d, v%d, v6" % (OO + i, OO + i))
for i in range(4):
    A("v_cvt_pk_bf16_f32 v%d, v%d, v%d" % (40 + i, OO + 2 * i, OO + 2 * i + 1))
A("buffer_store_dwordx4 v[40:43], v%d, %s, s%d offen sc1" % (vL16, s(SWS, 4), T0)); VM.issue("ostore")
stamp("p2", "o store issued")
L7 = if_wave(7)
rp_block(FL_RP1, 44)
A.place(L7)
VM.wait_all()
stamp("p2", "o drained")
barrier()
flag_stores(FL_O)
stamp("main", "C")
common_stamps = nstamp[0]
Lw7 = A.label("L_w7path")
A("s_cmp_eq_u32 s%d, 7" % sW)
A("s_cbranch_scc1 %s" % Lw7)

def o_dma_setup():
    A("s_lshr_b32 s%d, s%d, 2" % (T2, sW))
    A("s_lshl_b32 s%d, s%d, 2" % (T2, T2))
    A("s_add_u32 s%d, s%d, s%d" % (T0, sMT3, T2))
    A("s_lshl_b32 s%d, s%d, 14" % (T0, T0))
    A("s_add_u32 s%d, s%d, 0x%x" % (T0, T0, OFB))
    A("s_and_b32 s%d, s%d, 3" % (T2, sW))
    A("s_lshl_b32 s%d, s%d, 12" % (T2, T2))
    A("s_add_u32 s%d, s%d, s%d" % (T2, T2, sROo))
    A("s_lshl_b32 s%d, s%d, 12" % (T1, sW))
    A("s_and_b32 s%d, s%d, 0x3fff" % (T3, T2))
    A("s_add_u32 s%d, s%d, s%d" % (T3, T3, T0))
    A("s_add_u32 s%d, s%d, 2048" % (T4, T2))
    A("s_and_b32 s%d, s%d, 0x3fff" % (T4, T4))
    A("s_add_u32 s%d, s%d, s%d" % (T4, T4, T0))
    A("s_add_u32 m0, s%d, %d" % (T1, OLDS))
def o_dma_issue():
    for i in range(2):
        A("buffer_load_dwordx4 v%d, %s, s%d offen offset:%d sc1 lds" % (vL16, s(SWS, 4), T3, i * 1024)); VM.issue(("odma", i))
    A("s_add_u32 m0, s%d, %d" % (T1, OLDS + 2048))
    for i in range(2):
        A("buffer_load_dwordx4 v%d, %s, s%d offen offset:%d sc1 lds" % (vL16, s(SWS, 4), T4, i * 1024)); VM.issue(("odma", 2 + i))
def h_dma():
    A("s_mul_i32 s%d, s%d, 14336" % (T1, sW))
    A("s_mul_i32 s%d, s%d, %d" % (T0, sRB, 8 * 14336))
    A("s_add_u32 s%d, s%d, s%d" % (T0, T0, T1))
    A("s_add_u32 s%d, s%d, s%d" % (T0, T0, sROg))
    A("s_add_u32 s%d, s%d, 0x%x" % (T0, T0, HFB))
    for q in range(14):
        A("s_add_u32 m0, s%d, %d" % (T1, q * 1024))
        A("s_cmp_gt_u32 s%d, %d" % (sTHg, q))
        A("s_cselect_b32 s%d, 0, 14336" % T2)
        A("s_sub_u32 s%d, s%d, s%d" % (T2, T0, T2))
        A("s_add_u32 s%d, s%d, %d" % (T2, T2, q * 1024))
        A("buffer_load_dwordx4 v%d, %s, s%d offen sc1 lds" % (vL16, s(SWS, 4), T2)); VM.issue(("hdma", q))

Lle = A.label()
A("s_cmp_lg_u32 s%d, 0" % sRPOK)
A("s_cbranch_scc1 %s" % Lle)
for hd in range(16):
    wload(WOR + 4 * hd, "o", sWO, hd)
for fr in range(NE):
    wload(WGR + 4 * fr, "g", sWGU, fr)
A.place(Lle)
for fr in range(NE):
    VM.tags[("wgu", fr)] = VM.n
N1 = int(opt("n1", "14")); N2 = int(opt("n2", "20")); N3 = int(opt("n3", "28"))
for fr in range(NE, N1):
    wload(WGR + 4 * fr, "g", sWGU, fr, ("wgu", fr))
A("v_and_b32 v5, 1, v14")
A("v_lshrrev_b32 v6, 1, v14")
A("v_lshlrev_b32 v7, 4, v15")
A("v_lshl_add_u32 v7, v6, 8, v7")
A("v_mul_u32_u24 v8, 57344, v5")
A("v_add_u32 v8, v8, v7")
A("v_lshl_add_u32 v10, v5, 6, v15")
A("v_mul_u32_u24 v10, 896, v10")
A("v_lshl_add_u32 v10, v6, 4, v10")
A("v_add_u32 v3, %d, v%d" % (OLDS, vL16))
A("v_lshlrev_b32 v9, 4, v15")
A("v_add_u32 v9, %d, v9" % TBL)
o_dma_setup()
barrier()
o_dma_issue()
stamp("w", "D")
VM.wait(("odma", 3))
barrier()
stamp("w", "E")
AC3 = 240
def p3_read(hd):
    for a in range(2):
        A("ds_read_b128 %s, v3 offset:%d" % (v(FR + (hd % 4) * 8 + 4 * a, 4), a * 16384 + hd * 1024)); LG.issue(("o", hd, a))
for hd in range(4):
    p3_read(hd)
for hd in range(16):
    for a in range(2):
        LG.wait(("o", hd, a))
        mfma(AC3 + 4 * a, WOR + 4 * hd, FR + (hd % 4) * 8 + 4 * a, None if hd == 0 else AC3 + 4 * a)
    if hd + 4 < 16:
        p3_read(hd + 4)
    if hd < N2 - N1:
        wload(WGR + 4 * (N1 + hd), "g", sWGU, N1 + hd, ("wgu", N1 + hd))
for a in range(2):
    for i in range(2):
        A("v_lshlrev_b32 v%d, 16, v%d" % (FR + 4 * a + 2 * i, XRES + 2 * a + i))
        A("v_and_b32 v%d, 0xffff0000, v%d" % (FR + 4 * a + 2 * i + 1, XRES + 2 * a + i))
A("s_mul_i32 s%d, s%d, 14336" % (T0, sMT3))
A("s_lshl_b32 s%d, s%d, 9" % (T1, sNT))
A("s_add_u32 s%d, s%d, s%d" % (T0, T0, T1))
A("s_add_u32 s%d, s%d, 0x%x" % (T0, T0, HFB))
for i in range(8):
    A("v_add_f32 v%d, v%d, v%d" % (FR + i, FR + i, AC3 + i))
HPK = XRES
for i in range(4):
    A("v_cvt_pk_bf16_f32 v%d, v%d, v%d" % (FR + 8 + i, FR + 2 * i, FR + 2 * i + 1))
for i in range(4):
    A("v_mov_b32 v%d, v%d" % (HPK + i, FR + 8 + i))
A("v_permlane16_swap_b32 v%d, v%d" % (FR + 8, FR + 10))
A("v_permlane16_swap_b32 v%d, v%d" % (FR + 9, FR + 11))
A("buffer_store_dwordx4 %s, v8, %s, s%d offen sc1" % (v(FR + 8, 4), s(SWS, 4), T0)); VM.issue()
stamp("w", "h store issued")
VM.wait_all()
stamp("w", "h drained")
barrier()
flag_stores(FL_H)
for fr in range(N2, N3):
    wload(WGR + 4 * fr, "g", sWGU, fr, ("wgu", fr))
def colsum(fr):
    ks, gu = fr >> 1, fr & 1
    VM.wait(("wgu", fr))
    mfma(CS4 + 4 * gu, WGR + 4 * fr, ONES, None if ks == 0 else CS4 + 4 * gu)
for fr in range(N2):
    colsum(fr)
stamp("w", "pre F")
barrier()
stamp("w", "F")
h_dma()
for fr in range(N2, N3):
    colsum(fr)
N2 = N3
STEPS = [(ps, ks) for ks in range(7) for ps in range(2)] + [(0, ks) for ks in range(7, 14)] + [(1, ks) for ks in range(7, 14)]
def p4_read(t, m, base, nslot):
    ps, ks = STEPS[t]
    va = vL16 if ps == 0 else vL16B
    A("ds_read_b128 %s, v%d offset:%d" % (v(base + (t % nslot) * 16 + 4 * m, 4), va, m * 14336 + ks * 1024)); LG.issue(("h", t, m))
P4BAR = {0: 0, 2: 2, 6: 6, 14: 13}
def p4_gate(t):
    if t in P4BAR:
        VM.wait(("hdma", P4BAR[t]))
        barrier()
sACT = 20
A("s_mul_i32 s%d, s%d, %d" % (sACT, sRB, 8 * 57344))
A("s_lshl_b32 s%d, s%d, 9" % (T1, sFT))
A("s_add_u32 s%d, s%d, s%d" % (sACT, sACT, T1))
A("s_add_u32 s%d, s%d, 0x%x" % (sACT, sACT, ACTB))
TM = 248
STB = [28, 4]
def stats_wait(val):
    Lp = A.label(); Ld = A.label()
    LG.wait_all()
    A("s_mov_b32 s%d, 0" % sSPIN)
    A.place(Lp)
    A("ds_read_b32 v12, v11 offset:4")
    A("s_add_u32 s%d, s%d, 1" % (sSPIN, sSPIN))
    A("s_cmp_gt_u32 s%d, 0x100000" % sSPIN)
    A("s_waitcnt lgkmcnt(0)")
    A("s_cbranch_scc1 %s" % Ld)
    A("v_cmp_gt_u32 vcc, %d, v12" % val)
    A("s_cbranch_vccnz %s" % Lp)
    A.place(Ld)
def epilogue(ps):
    def rd(m):
        A("ds_read_b128 %s, v9 offset:%d" % (v(STB[m % 2], 4), 256 * (4 * ps + m))); LG.issue(("st", ps, m))
    rd(0); rd(1)
    for mp in range(2):
        pk = 252 if mp == 0 else 16
        for a in range(2):
            m = 2 * mp + a
            st = STB[m % 2]
            g0 = ACP[ps] + 8 * m
            LG.wait(("st", ps, m))
            for r in range(8):
                A("v_fmac_f32 v%d, v%d, v%d" % (g0 + r, CS4 + r, st))
            for r in range(4):
                A("v_mul_f32 v%d, v%d, v%d" % (TM + r, g0 + r, st + 1))
            for r in range(4):
                A("v_exp_f32 v%d, v%d" % (TM + r, TM + r))
            for r in range(4):
                A("v_mul_f32 v%d, v%d, v%d" % (g0 + r, g0 + r, g0 + 4 + r))
            for r in range(4):
                A("v_fma_f32 v%d, v%d, v%d, v%d" % (TM + r, TM + r, st + 2, st + 2))
            if m + 2 < 4:
                rd(m + 2)
            for r in range(4):
                A("v_rcp_f32 v%d, v%d" % (TM + r, TM + r))
            for r in range(4):
                A("v_mul_f32 v%d, v%d, v%d" % (g0 + r, g0 + r, TM + r))
            for i in range(2):
                A("v_cvt_pk_bf16_f32 v%d, v%d, v%d" % (pk + 2 * a + i, g0 + 2 * i, g0 + 2 * i + 1))
        A("s_add_u32 s%d, s%d, %d" % (T0, sACT, (4 * ps + 2 * mp) * 57344))
        A("v_permlane16_swap_b32 v%d, v%d" % (pk, pk + 2))
        A("v_permlane16_swap_b32 v%d, v%d" % (pk + 1, pk + 3))
        A("buffer_store_dwordx4 %s, v8, %s, s%d offen sc1" % (v(pk, 4), s(SWS, 4), T0)); VM.issue()
def wdreg(ks):
    return 64 + 4 * (ks % 48)
p4_gate(0)
stamp("w2", "chunk0")
for t in range(2):
    for m in range(4):
        p4_read(t, m, FR, 2)
gq = list(range(N2, 28))
wdq = []
DRAIN_AT = int(opt("drain", "24"))
WDRATE = int(opt("wdrate", "2"))
cs_pending = list(range(N2, 28))
for t in range(28):
    ps, ks = STEPS[t]
    p4_gate(t + 2)
    if t == 21:
        stamp("w2", "A mfma end")
        stats_wait(1)
        epilogue(0)
        stamp("w2", "epi A done")
    if t == DRAIN_AT:
        VM.wait_all()
        arrive(2, 6, both_flags(FL_ACT))
        stamp("w2", "A flagged")
        for q in range(8):
            wdq.append((ACP[0] + 4 * q, 28 + q))
    for gu in range(2):
        if 2 * ks + gu >= N2:
            VM.wait(("wgu", 2 * ks + gu))
    if ps == 0 and ks >= 7:
        for gu in range(2):
            if 2 * ks + gu in cs_pending:
                cs_pending.remove(2 * ks + gu)
                colsum(2 * ks + gu)
    nld = 0
    for m in range(4):
        LG.wait(("h", t, m))
        for gu in range(2):
            ac = ACP[ps] + 8 * m + 4 * gu
            mfma(ac, WGR + 8 * ks + 4 * gu, FR + (t % 2) * 16 + 4 * m, None if ks == 0 else ac)
        if t + 2 < 28:
            p4_read(t + 2, m, FR, 2)
        paused = 20 <= t < DRAIN_AT
        if t >= 2 and nld < WDRATE and m % 2 == 0 and not paused:
            if gq:
                fr = gq.pop(0)
                wload(WGR + 4 * fr, "g", sWGU, fr, ("wgu", fr)); nld += 1
            elif wdq:
                wdq.sort(key=lambda e: e[1])
                reg, fr = wdq.pop(0)
                wload(reg, "d", sWD, fr, ("wd", fr)); nld += 1
    if ps == 1:
        for gu in range(2):
            wdq.append((WGR + 8 * ks + 4 * gu, 2 * ks + gu))
assert not cs_pending and not gq
stamp("w2", "p4 loop end")
stats_wait(2)
epilogue(1)
stamp("w2", "act stores issued")
VM.wait_all()
arrive(3, 6, both_flags(FL_ACTB))
stamp("w2", "B flagged")
wdq += [(wdreg(ks), ks) for ks in range(36, 48)]
wdq.sort(key=lambda e: e[1])
NPRE = int(opt("npre", "8"))
for (reg, fr) in wdq[:NPRE]:
    wload(reg, "d", sWD, fr, ("wd", fr))
wdq = wdq[NPRE:]
barrier()
stamp("w2", "X1")
AC5 = 56
NB5 = 6
orderA = list(range(56))
orderB = list(range(55, -1, -1))
steps = [(0, ks) for ks in orderA] + [(1, ks) for ks in orderB]
def p5_read(n):
    a, ks = steps[n]
    A("ds_read_b128 %s, v%d offset:%d" % (v(FR + (n % NB5) * 4, 4), vL16 if a == 0 else vL16B, ks * 1024)); LG.issue(("a", n))
def p5_gate(n):
    if n >= 56 and (n - 56) % 14 == 0:
        barrier()
        if n == 56:
            stamp("w2", "X2")
for n in range(NB5):
    p5_read(n)
for n in range(112):
    a, ks = steps[n]
    VM.wait(("wd", ks))
    LG.wait(("a", n))
    mfma(AC5 + 4 * a, wdreg(ks), FR + (n % NB5) * 4, None if n in (0, 56) else AC5 + 4 * a)
    if a == 0 and ks < 8:
        wdq.append((wdreg(ks + 48), ks + 48))
    if a == 0 and wdq:
        reg, fr = wdq.pop(0)
        wload(reg, "d", sWD, fr, ("wd", fr))
    if a == 1 and ks >= 48:
        wload(wdreg(ks - 48), "d", sWD, ks - 48, ("wd", ks - 48))
    nn = n + NB5
    if nn < 112 and (nn < 56 or n >= 56):
        p5_gate(nn)
        p5_read(nn)
    if n == 55:
        stamp("w2", "P5A end")
        for q in range(56, 56 + NB5):
            p5_gate(q)
            p5_read(q)
for a in range(2):
    for i in range(2):
        A("v_lshlrev_b32 v%d, 16, v%d" % (FR + 4 * a + 2 * i, HPK + 2 * a + i))
        A("v_and_b32 v%d, 0xffff0000, v%d" % (FR + 4 * a + 2 * i + 1, HPK + 2 * a + i))
A("s_mul_i32 s%d, s%d, %d" % (T0, sMT3, 16 * 896))
A("s_lshl_b32 s%d, s%d, 5" % (T1, sNT))
A("s_add_u32 s%d, s%d, s%d" % (T0, T0, T1))
for i in range(8):
    A("v_add_f32 v%d, v%d, v%d" % (FR + i, FR + i, AC5 + i))
for i in range(4):
    A("v_cvt_pk_bf16_f32 v%d, v%d, v%d" % (FR + 8 + i, FR + 2 * i, FR + 2 * i + 1))
A("v_permlane16_swap_b32 v%d, v%d" % (FR + 8, FR + 10))
A("v_permlane16_swap_b32 v%d, v%d" % (FR + 9, FR + 11))
A("buffer_store_dwordx4 %s, v10, %s, s%d offen" % (v(FR + 8, 4), s(SOUT, 4), T0)); VM.issue()
stamp("w2", "out store issued")
def dump_stamps(slot):
    if STAMPS:
        A("s_lshl_b32 s%d, s2, 7" % T0)
        A("s_add_u32 s%d, s%d, 0x%x" % (T0, T0, STAMP_OFF + 64 * slot))
        for i in range(16):
            A("v_mov_b32 v%d, s%d" % (64 + i, sSTAMP + i))
        A("s_mov_b64 exec, 1")
        for q in range(4):
            A("buffer_store_dwordx4 %s, v%d, %s, s%d offen offset:%d" % (v(64 + 4 * q, 4), vL16, s(SWS, 4), T0, 16 * q))
if STAMPS:
    A("s_cmp_lg_u32 s%d, %d" % (sW, int(opt("wave", "0"))))
    A("s_cbranch_scc1 L_end")
    dump_stamps(1)
A("s_branch L_end")
nstamp[0] = common_stamps
sys.stderr.write("--- wave 7 path\n")

A.place(Lw7)
VM.done = VM.n - 1; LG.done = LG.n - 1
A("s_setprio 3")
poll_team(FL_O)
stamp("main", "o flags")
o_dma_setup()
barrier()
o_dma_issue()
VM.wait_all()
barrier()
stamp("main", "E")
for (r, lo, hi) in ((M1, 0x22222222, 0x22222222), (M2, 0x44444444, 0x44444444), (M3, 0x88888888, 0x88888888)):
    A("s_mov_b32 s%d, 0x%x\ns_mov_b32 s%d, 0x%x" % (r, lo, r + 1, hi))
A("v_lshlrev_b32 v9, 4, v15")
A("v_add_u32 v9, %d, v9" % TBL)
barrier()
stamp("main", "F0")
poll_team(FL_H)
stamp("main", "h flags")
barrier()
h_dma()
SG, SR, F7, NS7 = 64, 96, 160, 3
def finalize(ps):
    for m in range(4):
        g = SG + 16 * ps + 4 * m
        o = 128 + 4 * m
        A("v_cndmask_b32 v4, v%d, v%d, s[%d:%d]" % (g, g + 1, M1, M1 + 1))
        A("v_cndmask_b32 v4, v4, v%d, s[%d:%d]" % (g + 2, M2, M2 + 1))
        A("v_cndmask_b32 v4, v4, v%d, s[%d:%d]" % (g + 3, M3, M3 + 1))
        A("v_mul_f32 v%d, %s, v%d" % (o, f32(-1.0 / 448), SR + 16 * ps + 4 * m))
        A("v_mul_f32 v4, %s, v4" % f32(1.0 / 448))
        A("v_fma_f32 v4, -v%d, v%d, v4" % (o, o))
        A("v_max_f32 v4, 0, v4")
        A("v_add_f32 v%d, %s, v4" % (o + 2, f32(1e-5)))
        A("v_rsq_f32 v4, v%d" % (o + 2))
        A("v_mul_f32 v%d, %s, v4" % (o + 1, f32(-math.log2(math.e))))
        A("v_mov_b32 v%d, 0" % (o + 3))
    A("s_mov_b64 exec, s[%d:%d]" % (MD, MD + 1))
    for m in range(4):
        A("ds_write_b128 v9, %s offset:%d" % (v(128 + 4 * m, 4), 256 * (4 * ps + m))); LG.issue()
    exec_all()
    A("v_mov_b32 v4, %d" % (ps + 1))
    LG.wait_all()
    A("ds_write_b32 v11, v4 offset:4"); LG.issue()
issued = 0
def w7_fill(upto):
    global issued
    while issued <= min(upto, 27):
        p4_gate(issued)
        for m in range(4):
            p4_read(issued, m, F7, NS7)
        issued += 1
w7_fill(1)
for t in range(28):
    ps, ks = STEPS[t]
    for m in range(4):
        LG.wait(("h", t, m))
        fr = F7 + (t % NS7) * 16 + 4 * m
        g, r = SG + 16 * ps + 4 * m, SR + 16 * ps + 4 * m
        mfma(g, fr, fr, None if ks == 0 else g)
        mfma(r, ONES, fr, None if ks == 0 else r)
        if m == 0:
            w7_fill(t + 2)
    if ks == 13:
        finalize(ps)
LG.wait_all()
stamp("main", "stats done")
def act_dma(half, order):
    A("s_add_u32 s%d, s%d, %d" % (T0, sMT3, 4 * half))
    A("s_mul_i32 s%d, s%d, 57344" % (T0, T0))
    A("s_add_u32 s%d, s%d, s%d" % (T0, T0, sROd))
    A("s_add_u32 s%d, s%d, 0x%x" % (T0, T0, ACTB))
    cur = None
    for ks in order:
        g7, r7 = divmod(ks, 7)
        grp = (g7, r7 // 4)
        if grp != cur:
            cur = grp
            b0 = g7 * 7 + (r7 // 4) * 4
            A("s_mov_b32 m0, %d" % (half * 57344 + b0 * 1024))
            rot_addr(T2, T0, "d", ks)
            A("s_add_u32 s%d, s%d, %d" % (T2, T2, b0 * 1024))
        A("buffer_load_dwordx4 v%d, %s, s%d offen offset:%d sc1 lds" % (vL16, s(SWS, 4), T2, (ks - b0) * 1024)); VM.issue(("adma", half, ks))
poll_team(FL_ACT)
stamp("main", "actA flags")
act_dma(0, orderA)
VM.wait_all()
stamp("main", "actA landed")
barrier()
poll_team(FL_ACTB)
stamp("main", "actB flags")
for q in range(4):
    act_dma(1, orderB[14 * q: 14 * q + 14])
    if q >= 1:
        VM.wait(("adma", 1, orderB[14 * q - 1]))
        barrier()
VM.wait_all()
barrier()
stamp("main", "last chunk")
dump_stamps(0)
A.place("L_end")
A("s_endpgm")
A.raw("L_code_end:")
A.raw('.section .rodata,"a"\n.p2align 6\n.amdhsa_kernel %s_kernel' % NAME)
A.raw("""  .amdhsa_next_free_vgpr 256
  .amdhsa_next_free_sgpr 102
  .amdhsa_accum_offset 256
  .amdhsa_group_segment_fixed_size 0
  .amdhsa_kernarg_size 80
  .amdhsa_user_sgpr_count 2
  .amdhsa_user_sgpr_kernarg_segment_ptr 1
  .amdhsa_system_sgpr_workgroup_id_x 1
.end_amdhsa_kernel""")
out = [a for a in sys.argv[1:] if not a.startswith("--")]
txt = A.text()
if out:
    open(out[0], "w").write(txt)
else:
    sys.stdout.write(txt)
sys.stderr.write("nops inserted: %d\n" % (A.nops_inserted))
```

```python
import re

TRANS = ("v_exp_f32", "v_log_f32", "v_rcp_f32", "v_rsq_f32", "v_sqrt_f32", "v_sin_f32", "v_cos_f32")

_reg_re = re.compile(r"^(-|abs\()?([vsa])(\d+)\)?$")
_rng_re = re.compile(r"^(-)?([vsa])\[(\d+):(\d+)\]$")


def regs_of(tok):
    tok = tok.strip()
    m = _reg_re.match(tok)
    if m:
        return [(m.group(2), int(m.group(3)))]
    m = _rng_re.match(tok)
    if m:
        return [(m.group(2), i) for i in range(int(m.group(3)), int(m.group(4)) + 1)]
    if tok in ("vcc", "vcc_lo", "vcc_hi"):
        return [("vcc", 0)]
    if tok == "m0":
        return [("m0", 0)]
    if tok in ("exec", "exec_lo", "exec_hi"):
        return [("exec", 0)]
    return []


class Ins:
    __slots__ = ("text", "mn", "dst", "src", "kind", "srcc", "srcab", "states", "data")

    def __init__(self, text):
        self.text = text
        t = text.split(";")[0].strip()
        t = re.sub(r"\b(op_sel|op_sel_hi|neg_lo|neg_hi|quad_perm):\[[^\]]*\]", "", t)
        t = re.sub(r"hwreg\([^)]*\)", "hwreg", t).strip()
        parts = t.split(None, 1)
        self.mn = mn = parts[0]
        ops = []
        mods = ""
        if len(parts) > 1:
            raw = [x.strip() for x in parts[1].split(",")]
            last = raw[-1].split()
            raw[-1] = last[0] if last else ""
            mods = " ".join(last[1:])
            ops = raw
        self.dst = []
        self.src = []
        self.srcc = []
        self.srcab = []
        self.data = []
        self.states = 1
        R = regs_of
        if mn == "s_nop":
            self.kind = "nop"
            self.states = int(ops[0], 0) + 1
        elif mn.startswith("v_mfma"):
            self.kind = "mfma"
            self.dst = R(ops[0])
            self.srcab = R(ops[1]) + R(ops[2])
            self.srcc = R(ops[3])
            self.src = self.srcab + self.srcc
        elif mn.startswith("v_cmp"):
            self.kind = "valu"
            self.dst = R(ops[0])
            self.src = [r for o in ops[1:] for r in R(o)]
        elif mn.startswith("v_permlane"):
            self.kind = "permlane"
            self.dst = R(ops[0]) + R(ops[1])
            self.src = R(ops[0]) + R(ops[1])
        elif mn in ("v_readfirstlane_b32", "v_readlane_b32"):
            self.kind = "readlane"
            self.dst = R(ops[0])
            self.src = [r for o in ops[1:] for r in R(o)]
        elif mn.startswith("v_"):
            self.kind = "trans" if mn.replace("_e32", "").replace("_e64", "") in TRANS else "valu"
            self.dst = R(ops[0])
            self.src = [r for o in ops[1:] for r in R(o)]
            if mn.startswith(("v_fmac", "v_dot2c", "v_pk_fmac")):
                self.src += self.dst
            if mn.endswith("_dpp") or "row_" in mods:
                self.kind = "dpp"
        elif mn.startswith("buffer_load") or mn.startswith("global_load"):
            self.kind = "vmem"
            if " lds" in (" " + mods):
                self.kind = "dma"
                self.src = [r for o in ops for r in R(o)] + [("m0", 0)]
            else:
                self.dst = R(ops[0])
                self.src = [r for o in ops[1:] for r in R(o)]
        elif mn.startswith("buffer_store") or mn.startswith("global_store") or mn.startswith("buffer_atomic"):
            self.kind = "vmem"
            self.src = [r for o in ops for r in R(o)]
            if mn.endswith(("x4", "x3")):
                self.data = R(ops[0]) if mn.startswith("buffer") else R(ops[1])
        elif mn.startswith("ds_read") or mn.startswith("ds_bpermute") or mn.startswith("ds_swizzle"):
            self.kind = "ds"
            self.dst = R(ops[0])
            self.src = [r for o in ops[1:] for r in R(o)]
        elif mn.startswith("ds_"):
            self.kind = "ds"
            self.src = [r for o in ops for r in R(o)]
        elif mn.startswith("s_"):
            self.kind = "salu"
            if mn.startswith(("s_cmp", "s_cbranch", "s_branch", "s_waitcnt", "s_barrier", "s_endpgm", "s_setprio", "s_sleep")):
                self.src = [r for o in ops for r in R(o)]
            else:
                self.dst = R(ops[0]) if ops else []
                self.src = [r for o in ops[1:] for r in R(o)]
        else:
            raise ValueError("unknown instruction: " + text)


VALU_KINDS = ("valu", "trans", "permlane", "readlane", "dpp")


class Asm:
    def __init__(self):
        self.lines = []
        self.hist = []
        self.pos = 0
        self.pending = {}
        self.nlabel = 0
        self.nops_inserted = 0

    def raw(self, s):
        self.lines.append(s)

    def comment(self, s):
        self.lines.append("; " + s)

    def label(self, name=None):
        if name is None:
            self.nlabel += 1
            name = "L%d" % self.nlabel
        return name

    def place(self, name):
        self.lines.append(name + ":")
        for (h, p) in self.pending.pop(name, []):
            for (ins, ip) in h:
                d = p - ip
                self.hist.append((ins, self.pos - d))
        self.hist.sort(key=lambda e: e[1])

    def _need(self, c):
        need = 0
        csrc = set(c.src)
        cdst = set(c.dst)
        cval = c.kind in VALU_KINDS
        for (p, ip) in self.hist:
            dist = self.pos - ip - p.states
            req = 0
            pd = set(p.dst)
            pval = p.kind in VALU_KINDS
            if pval:
                vd = {r for r in pd if r[0] == "v"}
                sd = {r for r in pd if r[0] in ("s", "vcc")}
                if c.kind == "mfma" and vd & csrc:
                    req = max(req, 2)
                if c.kind == "readlane" and vd & csrc:
                    req = max(req, 1)
                if c.kind in ("permlane", "dpp") and vd & csrc:
                    req = max(req, 2)
                if p.kind == "trans" and cval and c.kind != "trans" and vd & (csrc | cdst):
                    req = max(req, 1)
                if p.kind == "trans" and c.kind == "trans" and vd & csrc:
                    req = max(req, 1)
                if sd & csrc:
                    if cval:
                        req = max(req, 2)
                    if c.kind in ("vmem", "dma"):
                        req = max(req, 5)
                    if c.kind == "salu":
                        req = max(req, 1)
            if p.kind == "mfma":
                big = "32x32" in p.mn
                n = 12 if big else 8
                if c.kind == "mfma":
                    if pd & set(c.srcab):
                        req = max(req, n)
                    if pd & set(c.srcc) and c.srcc != p.dst:
                        req = max(req, n - 2)
                    if pd & cdst and not (c.srcc == p.dst and c.dst == p.dst):
                        req = max(req, n)
                else:
                    if pd & (csrc | cdst):
                        req = max(req, n)
                    if cval and set(p.srcc) & cdst:
                        req = max(req, 7 if big else 3)
            if p.data and (set(p.data) & cdst):
                req = max(req, 2 if cval else 1)
            if p.kind == "salu" and ("m0", 0) in pd and c.kind == "dma":
                req = max(req, 1)
            need = max(need, req - dist)
        return need

    def __call__(self, text):
        for t in text.split("\n"):
            t = t.strip()
            if not t:
                continue
            if t.startswith(";"):
                self.lines.append(t)
                continue
            self._emit(t)

    def _emit(self, t):
        c = Ins(t)
        need = self._need(c)
        while need > 0:
            n = min(need, 16)
            self.lines.append("s_nop %d" % (n - 1))
            self.pos += n
            self.nops_inserted += 1
            need -= n
        self.lines.append(t)
        self.hist.append((c, self.pos))
        self.pos += c.states
        self.hist = [(i, ip) for (i, ip) in self.hist if self.pos - ip < 24]
        if c.mn.startswith(("s_cbranch", "s_branch")):
            tgt = t.split()[1]
            self.pending.setdefault(tgt, []).append((list(self.hist), self.pos))
            if c.mn == "s_branch":
                self.hist = []

    def reset_hist(self):
        self.hist = []
        self.pending = {}

    def text(self):
        return "\n".join(self.lines) + "\n"


def v(n, cnt=1):
    return "v%d" % n if cnt == 1 else "v[%d:%d]" % (n, n + cnt - 1)


def s(n, cnt=1):
    return "s%d" % n if cnt == 1 else "s[%d:%d]" % (n, n + cnt - 1)
```

```python
import sys, math, struct
from asmlib import Asm, v, s

NAME = "sequential_preLN__sliding_block__swiglu_ffn__prompt"
STAMPS = "--stamps" in sys.argv
def opt(name, default):
    for a in sys.argv:
        if a.startswith("--%s=" % name):
            return a.split("=")[1]
    return default

FL_KV, FL_O, FL_H, FL_ACT, FL_ACTB = 0, 0x8000, 0x10000, 0x18000, 0x28000
FL_RP1 = 0x20000
FL_HELLO = 0x21000
FL_RP2 = 0x22000
STAMP_OFF = 0x40000
FASTOFF = 0x80000
WOF = 0x100000
WGUF = 0x200000
WDF = 0x600000
KVB = 0x800000
OFB = 0xC00000
HFB = 0xE00000
ACTB = 0x1000000
WS_SIZE = 0x1700000
OOB = WS_SIZE + 0x100000
WQL = 57344
XST = 86016
RSC5 = XST + 65536
MISC = 157696
WDL = 114688
TBL = MISC
CSB = MISC + 2048
LFLAG = MISC + 2560
LDS_BYTES = MISC + 3072
OLDS = 114688
VREG = 24576

def f32(x):
    return "0x%08x" % struct.unpack("<I", struct.pack("<f", x))[0]

A = Asm()

class Cnt:
    def __init__(self, name, mx):
        self.name, self.mx, self.n, self.tags, self.done = name, mx, 0, {}, -1
    def issue(self, tag=None):
        if tag is not None:
            self.tags[tag] = self.n
        self.n += 1
    def wait(self, tag):
        i = self.tags[tag]
        if i <= self.done:
            return
        k = min(self.n - 1 - i, self.mx)
        A("s_waitcnt %s(%d)" % (self.name, k))
        self.done = self.n - 1 - k
    def wait_all(self):
        A("s_waitcnt %s(0)" % self.name)
        self.done = self.n - 1

VM = Cnt("vmcnt", 63)
LG = Cnt("lgkmcnt", 15)

SX, SWQ, SOUT, SDBG, SWS, SSRC, SCODE = 36, 40, 44, 48, 52, 56, 60
sW, sRB, sJ, sSLOT, sRPOK, sXCC = 64, 65, 66, 67, 68, 100
sRDST, sRSTR, sISWO, sHAS, sRPITCH, sRSRC = 70, 71, 72, 73, 74, 75
T0, T1, T2, T3, T4, T5 = 4, 5, 6, 7, 8, 9
sSPIN = 10
M1, M2, M3, MD = 76, 78, 80, 82
MS = [12, 76, 78, 80]
sSTAMP = 84
sNT, sMT3, sFT, sWO, sWGU, sWD = 22, 23, 16, 17, 18, 19
sR8, sRG = 24, 25
sRB4, sSLOT4 = 101, 33
sROo, sTHo, sROg, sTHg, sROd, sTHd = 26, 27, 28, 29, 30, 31
nstamp = [0]

vL, vL16, vL16B = 0, 1, 2
vPOLL = 13
ONES, XRES, NON, PT, QF = 16, 20, 24, 26, 28

STAMP_SEL = opt("sel", "main").split(",")
def stamp(group="main", name=""):
    if not STAMPS or (group not in STAMP_SEL and group != "always"):
        return
    i = nstamp[0]; nstamp[0] += 1
    assert i < 16
    sys.stderr.write("stamp %d: %s %s\n" % (i, group, name))
    A("s_memtime s[12:13]" if "--cyc" in sys.argv else "s_memrealtime s[12:13]")
    A("s_waitcnt lgkmcnt(0)")
    LG.done = LG.n - 1
    A("s_mov_b32 s%d, s12" % (sSTAMP + i))

def mfma(d, a, b, c=None):
    cs = "0" if c is None else v(c, 4)
    A("v_mfma_f32_16x16x32_bf16 %s, %s, %s, %s" % (v(d, 4), v(a, 4), v(b, 4), cs))
def srd(r, lo, size):
    A("s_mov_b32 s%d, s%d" % (r, lo))
    A("s_mov_b32 s%d, s%d" % (r + 1, lo + 1))
    A("s_mov_b32 s%d, 0x%x" % (r + 2, size))
    A("s_mov_b32 s%d, 0x20000" % (r + 3))
def set_exec(lo, hi):
    A("s_mov_b32 exec_lo, 0x%x" % lo)
    A("s_mov_b32 exec_hi, 0x%x" % hi)
def exec_all():
    A("s_mov_b64 exec, -1")
def barrier():
    A("s_barrier")
def if_wave(w):
    L = A.label()
    A("s_cmp_lg_u32 s%d, %d" % (sW, w))
    A("s_cbranch_scc1 %s" % L)
    return L
def store_non(soff, sc):
    A("buffer_store_dwordx2 %s, %s, %s, s%d offen%s" % (v(NON, 2), v(vL16), s(SWS, 4), soff, sc))

def flag_stores(base):
    A("s_lshl_b32 s%d, s%d, 7" % (T0, sSLOT))
    L = if_wave(5)
    A("s_add_u32 s%d, s%d, 0x%x" % (T0, T0, base + FASTOFF))
    A("s_mov_b64 exec, 1")
    store_non(T0, "")
    exec_all()
    A.place(L)
    L = if_wave(6)
    A("s_add_u32 s%d, s%d, 0x%x" % (T0, T0, base))
    A("s_mov_b64 exec, 1")
    store_non(T0, " sc1")
    exec_all()
    A.place(L)

def packed_flag(base):
    A("s_lshl_b32 s%d, s%d, 3" % (T0, sSLOT))
    A("s_add_u32 s%d, s%d, 0x%x" % (T0, T0, base))
    A("s_mov_b64 exec, 1")
    store_non(T0, " sc1")
    exec_all()

def arrive(word, last, action):
    LG.wait_all()
    A("v_mov_b32 v12, 1")
    A("s_mov_b64 exec, 1")
    A("ds_add_rtn_u32 v12, v11, v12 offset:%d" % (4 * word))
    A("s_waitcnt lgkmcnt(0)")
    A("v_readfirstlane_b32 s%d, v12" % T1)
    L = A.label()
    A("s_cmp_lg_u32 s%d, %d" % (T1, last))
    A("s_cbranch_scc1 %s" % L)
    action()
    A.place(L)
    exec_all()
def both_flags(base):
    def f():
        A("s_lshl_b32 s%d, s%d, 7" % (T0, sSLOT4))
        A("s_add_u32 s%d, s%d, 0x%x" % (T1, T0, base + FASTOFF))
        store_non(T1, "")
        A("s_add_u32 s%d, s%d, 0x%x" % (T1, T0, base))
        store_non(T1, " sc1")
    return f

def poll_flags(base):
    Lp = A.label(); Ld = A.label(); Lc = A.label()
    A("s_mov_b32 s%d, 0x%x" % (T0, base))
    A("s_mov_b32 s%d, 0" % sSPIN)
    A.place(Lp)
    A("buffer_load_dwordx2 %s, v%d, %s, s%d offen sc1" % (v(PT, 2), vPOLL, s(SWS, 4), T0))
    A("s_add_u32 s%d, s%d, 1" % (sSPIN, sSPIN))
    A("s_cmp_lg_u32 s%d, 0x1000" % sSPIN)
    A("s_cbranch_scc1 %s" % Lc)
    A("v_and_b32 v%d, 0x%x, v%d" % (vPOLL, FASTOFF - 1, vPOLL))
    A.place(Lc)
    A("s_cmp_gt_u32 s%d, 0x40000" % sSPIN)
    A("s_waitcnt vmcnt(0)")
    A("s_cbranch_scc1 %s" % Ld)
    A("v_cmp_ne_u64 vcc, %s, %s" % (v(PT, 2), v(NON, 2)))
    A("s_cbranch_vccnz %s" % Lp)
    A.place(Ld)
    exec_all()
def poll_team(base):
    lo, hi = {FL_O: (0xffff, 0), FL_H: (0, 0xffff), FL_ACT: (0, 0xffff0000), FL_ACTB: (0, 0xffff0000)}[base]
    set_exec(lo, hi)
    poll_flags(base)

def rp_check(base, tmp):
    A("s_mov_b32 s%d, 0x%x" % (T0, base))
    A("buffer_load_dwordx4 %s, v%d, %s, s%d offen sc1" % (v(tmp, 4), vL16, s(SWS, 4), T0))
    A("buffer_load_dwordx4 %s, v%d, %s, s%d offen offset:1024 sc1" % (v(tmp + 4, 4), vL16, s(SWS, 4), T0))
    A("s_waitcnt vmcnt(0)")
    for q in range(4):
        A("v_cmp_ne_u64 s[%d:%d], %s, %s" % (MS[q], MS[q] + 1, v(tmp + 2 * q, 2), v(NON, 2)))
    A("s_or_b64 s[12:13], s[12:13], s[76:77]")
    A("s_or_b64 s[78:79], s[78:79], s[80:81]")
    A("s_or_b64 s[12:13], s[12:13], s[78:79]")
def rp_publish(base, tmp, word):
    rp_check(base, tmp)
    A("s_cselect_b32 s%d, 0, 1" % sRPOK)
    A("v_mov_b32 v%d, s%d" % (tmp, sRPOK))
    A("ds_write_b32 v11, v%d offset:%d" % (tmp, 4 * word))
    A("s_waitcnt lgkmcnt(0)")
def rp_block(base, tmp):
    Lp = A.label(); Ld = A.label()
    A("s_cmp_lg_u32 s%d, 0" % sRPOK)
    A("s_cbranch_scc1 %s" % Ld)
    A("s_mov_b32 s%d, 0" % sSPIN)
    A.place(Lp)
    A("s_add_u32 s%d, s%d, 1" % (sSPIN, sSPIN))
    A("s_cmp_gt_u32 s%d, 0x40000" % sSPIN)
    A("s_cbranch_scc1 %s" % Ld)
    rp_check(base, tmp)
    A("s_cbranch_scc1 %s" % Lp)
    A.place(Ld)

A.raw("; @launch grid=(256,1,1) block=(512,1,1) lds=%d" % LDS_BYTES)
A.raw('.amdgcn_target "amdgcn-amd-amdhsa--gfx950"')
A.raw(".text")
A.raw(".globl %s_kernel\n.p2align 8\n.type %s_kernel,@function\n%s_kernel:" % (NAME, NAME, NAME))
A("s_cmp_ge_u32 s2, 256")
A("s_cbranch_scc1 L_end")
A("s_load_dwordx16 s[16:31], s[0:1], 0")
A("s_load_dwordx4 s[32:35], s[0:1], 64")
A("s_getpc_b64 s[60:61]")
A.raw("L_pc:")
A("s_mov_b32 s62, L_code_end - L_pc")
A("s_mov_b32 s63, 0x20000")
A("v_lshrrev_b32 v3, 6, v0")
A("v_and_b32 v%d, 63, v0" % vL)
A("v_readfirstlane_b32 s%d, v3" % sW)
A("v_lshlrev_b32 v%d, 4, v%d" % (vL16, vL))
A("v_add_u32 v%d, 57344, v%d" % (vL16B, vL16))
A("s_and_b32 s%d, s2, 7" % T0)
sIDX = 3
A("s_lshr_b32 s%d, s2, 3" % sIDX)
A("s_lshr_b32 s%d, s%d, 4" % (T2, sIDX))
A("s_lshl_b32 s%d, s%d, 1" % (sRB, T0))
A("s_add_u32 s%d, s%d, s%d" % (sRB, sRB, T2))
A("s_and_b32 s%d, s%d, 15" % (sJ, sIDX))
A("s_lshl_b32 s%d, s%d, 4" % (sSLOT, sRB))
A("s_add_u32 s%d, s%d, s%d" % (sSLOT, sSLOT, sJ))
A("s_getreg_b32 s%d, hwreg(HW_REG_XCC_ID, 0, 3)" % sXCC)
if opt("map84", "1") == "1":
    A("s_lshr_b32 s%d, s%d, 2" % (T1, T0))
    A("s_lshl_b32 s%d, s%d, 3" % (T1, T1))
    A("s_lshr_b32 s%d, s%d, 2" % (T3, sIDX))
    A("s_add_u32 s%d, s%d, s%d" % (sRB4, T1, T3))
    A("s_and_b32 s%d, s%d, 3" % (T1, T0))
    A("s_lshl_b32 s%d, s%d, 2" % (T1, T1))
    A("s_and_b32 s%d, s%d, 3" % (T3, sIDX))
    A("s_add_u32 s%d, s%d, s%d" % (sSPIN, T1, T3))
else:
    A("s_mov_b32 s%d, s%d" % (sRB4, sRB))
    A("s_mov_b32 s%d, s%d" % (sSPIN, sJ))
A("s_lshl_b32 s%d, s%d, 5" % (T2, sW))
A("s_add_u32 s%d, s%d, s%d" % (T2, T2, sIDX))
A("s_lshl_b32 s%d, s%d, 10" % (T2, T2))
A("buffer_load_dwordx4 v[172:175], v%d, s[60:63], s%d offen" % (vL16, T2)); VM.issue()
A("v_lshrrev_b32 v12, 3, v%d" % vL)
A("v_and_b32 v13, 7, v%d" % vL)
A("v_lshrrev_b32 v14, 4, v%d" % vL)
A("v_and_b32 v15, 15, v%d" % vL)
A("v_xor_b32 v3, v13, v14")
A("v_mul_u32_u24 v4, 896, v12")
A("v_lshl_add_u32 v3, v3, 4, v4")
A("v_xor_b32 v4, v13, v14")
A("v_xor_b32 v4, 4, v4")
A("v_mul_u32_u24 v5, 896, v12")
A("v_add_u32 v5, %d, v5" % (8 * 896))
A("v_lshl_add_u32 v4, v4, 4, v5")
A("v_lshrrev_b32 v5, 2, v%d" % vL)
A("v_mul_u32_u24 v7, 2688, v5")
A("v_lshrrev_b32 v5, 5, v%d" % vL)
A("v_lshlrev_b32 v5, 1, v5")
A("v_and_b32 v6, 3, v%d" % vL)
A("v_xor_b32 v5, v5, v6")
A("v_lshl_add_u32 v7, v5, 4, v7")
A("s_lshl_b32 s%d, s%d, 3" % (T0, sIDX))
A("s_add_u32 s%d, s%d, s%d" % (T0, T0, sW))
A("s_lshl_b32 s%d, s%d, 5" % (T1, T0))
A("v_add_u32 v178, s%d, v%d" % (T1, vL))
A("v_lshrrev_b32 v179, 1, v178")
A("v_mul_u32_u24 v179, 9363, v179")
A("v_lshrrev_b32 v179, 16, v179")
A("v_mul_u32_u24 v179, 7, v179")
A("v_add3_u32 v178, v178, v179, 7")
A("v_lshlrev_b32 v160, 7, v178")
A("s_lshl_b32 s%d, s%d, 4" % (T1, T0))
A("v_add_u32 v178, s%d, v%d" % (T1, vL))
A("v_mul_u32_u24 v179, 9363, v178")
A("v_lshrrev_b32 v179, 16, v179")
A("v_mul_u32_u24 v179, 14, v179")
A("v_add_u32 v178, v178, v179")
A("v_lshlrev_b32 v161, 7, v178")
A("v_lshlrev_b32 v162, 7, v%d" % vL)
A("s_waitcnt lgkmcnt(0)")
stamp("always", "start")
srd(SWQ, 18, 448 * 2688)
srd(SX, 16, 2048 * 896)
set_exec(0xffffffff, 0)
A("buffer_load_dword v172, v160, %s, 0 offen" % s(SWQ, 4)); VM.issue()
A("s_lshl_b32 s%d, s%d, 3" % (T0, sJ))
A("s_add_u32 s%d, s%d, s%d" % (T0, T0, sW))
A("s_mul_i32 s%d, s%d, 896" % (T0, T0))
A("s_mul_i32 s%d, s%d, %d" % (T1, sRB, 128 * 896))
A("s_add_u32 s%d, s%d, s%d" % (T0, T0, T1))
A("s_mov_b64 exec, 0x7f")
A("buffer_load_dword v172, v162, %s, s%d offen" % (s(SX, 4), T0)); VM.issue()
exec_all()
srd(SWS, 34, WS_SIZE)
srd(SDBG, 32, 256)
srd(SOUT, 30, 2048 * 896)
Ln = A.label()
A("s_cmp_lg_u32 s2, 0")
A("s_cbranch_scc1 %s" % Ln)
A("s_cmp_lg_u32 s%d, 7" % sW)
A("s_cbranch_scc1 %s" % Ln)
A("s_memrealtime s[12:13]")
A("s_waitcnt lgkmcnt(0)")
A("s_lshl_b64 s[12:13], s[12:13], 3")
A("s_or_b32 s13, s13, 0x80000000")
A("v_mov_b32 v%d, s12" % NON)
A("v_mov_b32 v%d, s13" % (NON + 1))
A("s_mov_b64 exec, 1")
A("buffer_store_dwordx2 %s, v%d, %s, 0 offen sc1" % (v(NON, 2), vL16, s(SDBG, 4)))
exec_all()
A.place(Ln)

A("s_lshl_b32 s%d, s%d, 8" % (T0, sW))
A("s_add_u32 s%d, s%d, s2" % (T0, T0))
A("s_cmp_lt_u32 s%d, 1176" % T0)
A("s_cselect_b32 s%d, 1, 0" % sHAS)
A("s_min_u32 s%d, s%d, 1175" % (T0, T0))
Lgu = A.label(); Lwd = A.label(); Lrp_done = A.label(); Lnwo = A.label()
A("s_mov_b32 s%d, 0" % sISWO)
A("s_mov_b32 s%d, 0x20000" % (SSRC + 3))
A("s_cmp_lg_u32 s%d, 5" % sW)
A("s_cbranch_scc1 %s" % Lnwo)
A("s_cmp_lt_u32 s2, 112")
A("s_cselect_b32 s%d, 1, 0" % sISWO)
A("s_min_u32 s%d, s2, 111" % T0)
A("s_mul_i32 s%d, s%d, 9363" % (T1, T0))
A("s_lshr_b32 s%d, s%d, 16" % (T1, T1))
A("s_mul_i32 s%d, s%d, 7" % (T2, T1))
A("s_sub_u32 s%d, s%d, s%d" % (T2, T0, T2))
A("s_mov_b32 s%d, s20\ns_mov_b32 s%d, s21\ns_mov_b32 s%d, %d" % (SSRC, SSRC + 1, SSRC + 2, 448 * 896))
A("s_mov_b32 s%d, 896" % sRPITCH)
A("s_mul_i32 s%d, s%d, %d" % (sRSRC, T1, 28 * 896))
A("s_lshl_b32 s%d, s%d, 7" % (T3, T2))
A("s_add_u32 s%d, s%d, s%d" % (sRSRC, sRSRC, T3))
A("s_lshl_b32 s%d, s%d, 16" % (sRDST, T2))
A("s_lshl_b32 s%d, s%d, 10" % (T3, T1))
A("s_add_u32 s%d, s%d, s%d" % (sRDST, sRDST, T3))
A("s_add_u32 s%d, s%d, 0x%x" % (sRDST, sRDST, WOF))
A("s_mov_b32 s%d, 16384" % sRSTR)
A("s_branch %s" % Lrp_done)
A.place(Lnwo)
A("s_cmp_lt_u32 s%d, 784" % T0)
A("s_cbranch_scc1 %s" % Lgu)
A("s_sub_u32 s%d, s%d, 784" % (T0, T0))
A("s_mul_i32 s%d, s%d, 9363" % (T1, T0))
A("s_lshr_b32 s%d, s%d, 16" % (T1, T1))
A("s_mul_i32 s%d, s%d, 7" % (T2, T1))
A("s_sub_u32 s%d, s%d, s%d" % (T2, T0, T2))
A("s_mov_b32 s%d, s28\ns_mov_b32 s%d, s29\ns_mov_b32 s%d, %d" % (SSRC, SSRC + 1, SSRC + 2, 1792 * 896))
A("s_mov_b32 s%d, 896" % sRPITCH)
A("s_mul_i32 s%d, s%d, %d" % (sRSRC, T1, 32 * 896))
A("s_lshl_b32 s%d, s%d, 7" % (T3, T2))
A("s_add_u32 s%d, s%d, s%d" % (sRSRC, sRSRC, T3))
A("s_mul_i32 s%d, s%d, %d" % (sRDST, T2, 4 * 57344))
A("s_lshl_b32 s%d, s%d, 10" % (T3, T1))
A("s_add_u32 s%d, s%d, s%d" % (sRDST, sRDST, T3))
A("s_add_u32 s%d, s%d, 0x%x" % (sRDST, sRDST, WDF))
A("s_mov_b32 s%d, 57344" % sRSTR)
A("s_branch %s" % Lrp_done)
A.place(Lgu)
A("s_cmp_ge_u32 s%d, 392" % T0)
A("s_cselect_b32 s%d, s26, s24" % SSRC)
A("s_cselect_b32 s%d, s27, s25" % (SSRC + 1))
A("s_cselect_b32 s%d, 392, 0" % T4)
A("s_cselect_b32 s%d, 1024, 0" % T5)
A("s_mov_b32 s%d, %d" % (SSRC + 2, 448 * 3584))
A("s_sub_u32 s%d, s%d, s%d" % (T0, T0, T4))
A("s_mul_i32 s%d, s%d, 2341" % (T1, T0))
A("s_lshr_b32 s%d, s%d, 16" % (T1, T1))
A("s_mul_i32 s%d, s%d, 28" % (T2, T1))
A("s_sub_u32 s%d, s%d, s%d" % (T2, T0, T2))
A("s_mov_b32 s%d, 3584" % sRPITCH)
A("s_mul_i32 s%d, s%d, %d" % (sRSRC, T1, 32 * 3584))
A("s_lshl_b32 s%d, s%d, 7" % (T3, T2))
A("s_add_u32 s%d, s%d, s%d" % (sRSRC, sRSRC, T3))
A("s_mul_i32 s%d, s%d, %d" % (sRDST, T2, 4 * 28672))
A("s_lshl_b32 s%d, s%d, 11" % (T3, T1))
A("s_add_u32 s%d, s%d, s%d" % (sRDST, sRDST, T3))
A("s_add_u32 s%d, s%d, s%d" % (sRDST, sRDST, T5))
A("s_add_u32 s%d, s%d, 0x%x" % (sRDST, sRDST, WGUF))
A("s_mov_b32 s%d, 28672" % sRSTR)
A.place(Lrp_done)

def rs_loads(RS, vt, track):
    A("v_lshrrev_b32 v%d, 3, v%d" % (vt, vL))
    A("v_mul_lo_u32 v%d, v%d, s%d" % (vt, vt, sRPITCH))
    A("v_and_b32 v%d, 7, v%d" % (vt + 1, vL))
    A("v_lshl_add_u32 v%d, v%d, 4, v%d" % (vt, vt + 1, vt))
    A("s_lshl_b32 s%d, s%d, 3" % (T1, sRPITCH))
    A("s_mov_b32 s%d, s%d" % (T0, sRSRC))
    for t in range(4):
        A("buffer_load_dwordx4 %s, v%d, %s, s%d offen" % (v(RS + 4 * t, 4), vt, s(SSRC, 4), T0))
        if track:
            VM.issue(("rs", t))
        if t < 3:
            A("s_add_u32 s%d, s%d, s%d" % (T0, T0, T1))
def repack_lds(RS, RO, iswo, va, vb):
    if iswo:
        A("s_mov_b32 s%d, %d" % (T2, RSC5))
    else:
        A("s_lshl_b32 s%d, s%d, 12" % (T2, sW))
        A("s_add_u32 s%d, s%d, %d" % (T2, T2, XST))
    A("v_add_u32 v%d, s%d, v%d" % (va, T2, vL16))
    for t in range(4):
        A("ds_write_b128 v%d, %s offset:%d" % (va, v(RS + 4 * t, 4), t * 1024))
    A("v_lshlrev_b32 v%d, %d, v14" % (va, 9 if iswo else 10))
    A("v_lshrrev_b32 v%d, 2, v15" % vb)
    A("v_lshl_add_u32 v%d, v%d, 7, v%d" % (va, vb, va))
    A("v_and_b32 v%d, 3, v%d" % (vb, vL))
    A("v_lshl_add_u32 v%d, v%d, 3, v%d" % (va, vb, va))
    A("v_add_u32 v%d, s%d, v%d" % (va, T2, va))
    hoff = 2048 if iswo else 512
    for t4 in range(4):
        A("ds_read_b64_tr_b16 %s, v%d offset:%d" % (v(RO + 4 * t4, 2), va, t4 * 32))
        A("ds_read_b64_tr_b16 %s, v%d offset:%d" % (v(RO + 4 * t4 + 2, 2), va, hoff + t4 * 32))
    A("s_waitcnt lgkmcnt(0)")
    if iswo:
        set_exec(0, 0xFFFF0000)
        for t4 in range(4):
            A("v_mov_b32 v%d, 0\nv_mov_b32 v%d, 0" % (RO + 4 * t4 + 2, RO + 4 * t4 + 3))
        exec_all()
def repack_stores(RO, sdst, track):
    A("s_mov_b32 s%d, s%d" % (T0, sdst))
    for t4 in range(4):
        A("buffer_store_dwordx4 %s, v%d, %s, s%d offen sc1" % (v(RO + 4 * t4, 4), vL16, s(SWS, 4), T0))
        if track:
            VM.issue()
        if t4 < 3:
            A("s_add_u32 s%d, s%d, s%d" % (T0, T0, sRSTR))
RS1, RO1 = 56, 180
Lx = A.label()
A("s_cmp_eq_u32 s%d, 0" % sISWO)
A("s_cbranch_scc1 %s" % Lx)
rs_loads(RS1, 178, False)
A.place(Lx)
barrier()
stamp("p1", "coop issued")

sXO, sXL, sWG_, sWL_, sWH = 11, 14, 15, 69, 68
A("s_lshl_b32 s%d, s%d, 7" % (T0, sRB))
A("s_lshl_b32 s%d, s%d, 4" % (T1, sW))
A("s_add_u32 s%d, s%d, s%d" % (T0, T0, T1))
A("s_mul_i32 s%d, s%d, 896" % (sXO, T0))
A("s_lshl_b32 s%d, s%d, 13" % (sXL, sW))
A("s_add_u32 s%d, s%d, %d" % (sXL, sXL, XST))
A("s_mul_i32 s%d, s%d, 56" % (sWH, sJ))
A("s_lshr_b32 s%d, s%d, 1" % (T0, sW))
A("s_mul_i32 s%d, s%d, 43008" % (T0, T0))
A("s_and_b32 s%d, s%d, 1" % (T1, sW))
A("s_add_u32 s%d, s%d, 1" % (T1, T1))
A("s_mul_i32 s%d, s%d, 896" % (T1, T1))
A("s_add_u32 s%d, s%d, s%d" % (T0, T0, T1))
A("s_add_u32 s%d, s%d, s%d" % (sWG_, sWH, T0))
A("s_lshl_b32 s%d, s%d, 10" % (sWL_, sW))
def w_dma(c):
    A("s_add_u32 m0, s%d, %d" % (sWL_, c * 8192))
    A("s_add_u32 s%d, s%d, %d" % (T2, sWG_, c * 4 * 43008))
    A("buffer_load_dwordx4 v7, %s, s%d offen lds" % (s(SWQ, 4), T2)); VM.issue()
def wq_dma(i):
    A("s_add_u32 s%d, s%d, %d" % (T0, sW, 8 * i))
    if i == 3:
        A("s_min_u32 s%d, s%d, 27" % (T0, T0))
    A("s_mul_i32 s%d, s%d, 43008" % (T2, T0))
    A("s_lshl_b32 s%d, s%d, 10" % (T0, T0))
    A("s_add_u32 m0, s%d, %d" % (T0, WQL))
    A("s_add_u32 s%d, s%d, s%d" % (T2, T2, sWH))
    A("buffer_load_dwordx4 v7, %s, s%d offen lds" % (s(SWQ, 4), T2)); VM.issue()
def x_load(c):
    for hh in range(2):
        A("s_add_u32 m0, s%d, %d" % (sXL, (c % 4) * 2048 + hh * 1024))
        A("s_add_u32 s%d, s%d, %d" % (T0, sXO, c * 128))
        A("buffer_load_dwordx4 v%d, %s, s%d offen lds" % (3 + hh, s(SX, 4), T0))
        VM.issue(("x", c) if hh == 1 else None)
def chunk_loads(c):
    w_dma(c)
    x_load(c)

A("v_lshrrev_b32 v5, 1, v15")
A("v_xor_b32 v5, v5, v14")
A("v_lshrrev_b32 v6, 3, v15")
A("v_lshlrev_b32 v6, 10, v6")
A("v_and_b32 v8, 7, v15")
A("v_lshl_add_u32 v6, v8, 7, v6")
A("v_add_u32 v6, s%d, v6" % sXL)
A("v_xor_b32 v8, 4, v5")
A("v_lshl_add_u32 v5, v5, 4, v6")
A("v_lshl_add_u32 v6, v8, 4, v6")
A("v_lshrrev_b32 v8, 1, v14")
A("v_lshlrev_b32 v8, 11, v8")
A("v_and_b32 v9, 1, v14")
A("v_lshrrev_b32 v10, 2, v15")
A("v_lshl_add_u32 v10, v9, 3, v10")
A("v_lshl_add_u32 v8, v10, 6, v8")
A("v_and_b32 v10, 3, v%d" % vL)
A("v_lshl_add_u32 v8, v10, 3, v8")
A("v_lshl_add_u32 v10, v9, 5, v8")
A("v_xor_b32 v9, 1, v9")
A("v_lshl_add_u32 v9, v9, 5, v8")
A("v_mov_b32 v8, v10")
sTT = 3
A("s_and_b32 s%d, s%d, 1" % (T1, sW))
A("s_lshl_b32 s%d, s%d, 10" % (T1, T1))
A("v_add_u32 v163, s%d, v8" % T1)
A("v_add_u32 v164, s%d, v9" % T1)
A("v_xor_b32 v165, 0x2000, v5")
A("s_xor_b32 s%d, s%d, 1" % (T1, sW))
A("s_sub_u32 s%d, s%d, s%d" % (T1, T1, sW))
A("s_mul_i32 s%d, s%d, 8192" % (T1, T1))
A("v_add_u32 v165, s%d, v5" % T1)
A("v_add_u32 v166, s%d, v6" % T1)
for i in range(4):
    A("v_mov_b32 v%d, 0x3f803f80" % (ONES + i))
for (r, lo, hi) in ((M1, 0x22222222, 0x22222222), (M2, 0x44444444, 0x44444444), (M3, 0x88888888, 0x88888888), (MD, 0x00F0000F, 0xF0000F00)):
    A("s_mov_b32 s%d, 0x%x\ns_mov_b32 s%d, 0x%x" % (r, lo, r + 1, hi))
A("v_mov_b32 v11, %d" % LFLAG)
for i in range(4):
    A("v_mov_b32 v%d, 0" % (32 + i))
A("ds_write_b128 v11, v[32:35]"); LG.issue()
A("ds_write_b128 v11, v[32:35] offset:16"); LG.issue()
A("s_and_b32 s%d, s%d, 3" % (T0, sJ))
A("s_mul_i32 s%d, s%d, 7" % (sNT, T0))
A("s_add_u32 s%d, s%d, s%d" % (sNT, sNT, sW))
A("s_lshr_b32 s%d, s%d, 2" % (T0, sJ))
A("s_lshl_b32 s%d, s%d, 3" % (sMT3, sRB))
A("s_add_u32 s%d, s%d, s%d" % (sMT3, sMT3, T0))
A("s_lshl_b32 s%d, s%d, 4" % (sSLOT4, sRB4))
A("s_add_u32 s%d, s%d, s%d" % (sSLOT4, sSLOT4, sSPIN))
A("s_mul_i32 s%d, s%d, 7" % (sFT, sSPIN))
A("s_add_u32 s%d, s%d, s%d" % (sFT, sFT, sW))
A("s_lshl_b32 s%d, s%d, 14" % (sWO, sNT))
A("s_add_u32 s%d, s%d, 0x%x" % (sWO, sWO, WOF))
A("s_mul_i32 s%d, s%d, 28672" % (sWGU, sFT))
A("s_add_u32 s%d, s%d, 0x%x" % (sWGU, sWGU, WGUF))
A("s_mul_i32 s%d, s%d, 57344" % (sWD, sNT))
A("s_add_u32 s%d, s%d, 0x%x" % (sWD, sWD, WDF))
A("s_and_b32 s%d, s%d, 1" % (T0, sRB))
A("s_lshl_b32 s%d, s%d, 2" % (sR8, T0))
A("s_lshr_b32 s%d, s%d, 2" % (T1, sJ))
A("s_add_u32 s%d, s%d, s%d" % (sR8, sR8, T1))
if opt("map84", "1") == "1":
    A("s_and_b32 s%d, s%d, 7" % (sRG, sRB4))
    A("s_mul_i32 s%d, s%d, 7" % (sRG, sRG))
    A("s_lshr_b32 s%d, s%d, 2" % (sRG, sRG))
else:
    A("s_mul_i32 s%d, s%d, 7" % (sRG, T0))
    A("s_add_u32 s%d, s%d, s%d" % (sRG, sRG, sJ))
    for _ in range(2):
        A("s_cmp_ge_u32 s%d, 14" % sRG)
        A("s_cselect_b32 s%d, 14, 0" % T1)
        A("s_sub_u32 s%d, s%d, s%d" % (sRG, sRG, T1))
if opt("rot", "1") == "0":
    A("s_mov_b32 s%d, 0\ns_mov_b32 s%d, 0" % (sR8, sRG))
A("s_lshl_b32 s%d, s%d, 11" % (sROo, sR8))
A("s_lshl_b32 s%d, s%d, 1" % (T0, sR8))
A("s_sub_u32 s%d, 16, s%d" % (sTHo, T0))
A("s_lshl_b32 s%d, s%d, 10" % (sROg, sRG))
A("s_sub_u32 s%d, 14, s%d" % (sTHg, sRG))
A("s_mul_i32 s%d, s%d, 7168" % (sROd, sR8))
A("s_mul_i32 s%d, s%d, 7" % (T0, sR8))
A("s_sub_u32 s%d, 56, s%d" % (sTHd, T0))
A("s_add_u32 s%d, s%d, s%d" % (sWO, sWO, sROo))
A("s_add_u32 s%d, s%d, s%d" % (sWGU, sWGU, sROg))
A("s_add_u32 s%d, s%d, s%d" % (sWGU, sWGU, sROg))
A("s_add_u32 s%d, s%d, s%d" % (sWD, sWD, sROd))
chunk_loads(0)
barrier()
chunk_loads(1)
L7 = if_wave(7)
A("v_mov_b32 v12, 0")
A("buffer_load_dwordx2 %s, v12, %s, 0 offen sc1" % (v(NON, 2), s(SDBG, 4)))
A.place(L7)
stamp("p1", "issued")

ACC = 72
AKV = 80
GR, RSUM, CSA = 96, 100, 104
XP = 196
XO = 112
WF = 120
def chunk_gate(c):
    VM.wait(("x", c))
    barrier()
    stamp("p1", "chunk %d barrier" % c)
def p1_reads(ks):
    c, e = ks >> 1, ks & 1
    A("ds_read_b128 %s, v%d offset:%d" % (v(XP + 4 * ks, 4), 5 + e, (c % 4) * 2048)); LG.issue(("x", ks))
    for f in range(2):
        d = WF + e * 8 + f * 4
        A("ds_read_b64_tr_b16 %s, v%d offset:%d" % (v(d, 2), 163 + f, ks * 4096)); LG.issue()
        A("ds_read_b64_tr_b16 %s, v%d offset:%d" % (v(d + 2, 2), 163 + f, ks * 4096 + 256)); LG.issue(("w", ks, f))
    A("ds_read_b128 %s, v%d offset:%d" % (v(XO + 4 * e, 4), 165 + e, (c % 4) * 2048)); LG.issue(("xo", ks))
LOADAT = {0: 2, 1: 3, 3: 4, 5: 5, 7: 6}
def p1_side(ks):
    if ks == 4:
        L7 = if_wave(7)
        Lp = A.label(); Ld = A.label()
        A("s_mov_b32 s%d, 0" % sSPIN)
        A("v_cmp_ne_u32 vcc, 0, v%d" % (NON + 1))
        A("s_cbranch_vccnz %s" % Ld)
        A.place(Lp)
        A("buffer_load_dwordx2 %s, v12, %s, 0 offen sc1" % (v(NON, 2), s(SDBG, 4)))
        A("s_add_u32 s%d, s%d, 1" % (sSPIN, sSPIN))
        A("s_cmp_gt_u32 s%d, 0x40000" % sSPIN)
        A("s_waitcnt vmcnt(0)")
        A("s_cbranch_scc1 %s" % Ld)
        A("v_cmp_eq_u32 vcc, 0, v%d" % (NON + 1))
        A("s_cbranch_vccnz %s" % Lp)
        A.place(Ld)
        A("ds_write_b64 v11, %s offset:24" % v(NON, 2))
        A("v_or_b32 v%d, s%d, v%d" % (PT, sXCC, NON))
        A("v_mov_b32 v%d, v%d" % (PT + 1, NON + 1))
        A("s_lshl_b32 s%d, s%d, 3" % (T0, sSLOT))
        A("s_add_u32 s%d, s%d, 0x%x" % (T0, T0, FL_HELLO))
        A("s_mov_b64 exec, 1")
        A("buffer_store_dwordx2 %s, %s, %s, s%d offen sc1" % (v(PT, 2), v(vL16), s(SWS, 4), T0))
        A("s_lshl_b32 s%d, s%d, 3" % (T0, sSLOT4))
        A("s_add_u32 s%d, s%d, 0x%x" % (T0, T0, FL_HELLO + 0x800))
        A("buffer_store_dwordx2 %s, %s, %s, s%d offen sc1" % (v(PT, 2), v(vL16), s(SWS, 4), T0))
        exec_all()
        A("s_waitcnt lgkmcnt(0)")
        A.place(L7)
def p1_loop(isv):
    def mm(acc, wf, xf, first):
        if isv:
            mfma(acc, xf, wf, None if first else acc)
        else:
            mfma(acc, wf, xf, None if first else acc)
    chunk_gate(0)
    p1_reads(0)
    for ks in range(14):
        nk = ks + 1
        e = ks & 1
        first = ks == 0
        if nk < 14 and nk % 2 == 0:
            chunk_gate(nk >> 1)
        if nk < 14:
            p1_reads(nk)
        xf, xo = XP + 4 * ks, XO + 4 * e
        LG.wait(("x", ks))
        mfma(GR, xf, xf, None if first else GR)
        mfma(RSUM, ONES, xf, None if first else RSUM)
        for f in range(2):
            wf = WF + e * 8 + f * 4
            LG.wait(("w", ks, f))
            mm(AKV + 4 * f, wf, xf, first)
            mm(CSA + 4 * f, wf, ONES, first)
            if ks in LOADAT and f == 0:
                w_dma(LOADAT[ks])
        LG.wait(("xo", ks))
        for f in range(2):
            mm(AKV + 8 + 4 * f, WF + e * 8 + f * 4, xo, first)
        if ks in LOADAT:
            x_load(LOADAT[ks])
        if isv:
            p1_side(ks)
        if ks == 9:
            A("s_mov_b64 exec, 0xffff")
            A("buffer_load_dword v252, v161, %s, 0 offen" % s(SWQ, 4)); VM.issue()
            exec_all()
            A("ds_read_b64 %s, v11 offset:24" % v(NON, 2)); LG.issue()
        if ks == 12:
            for i in range(4):
                wq_dma(i)
    stamp("main", "p1 loop end")
    A("v_cndmask_b32 v4, v%d, v%d, s[%d:%d]" % (GR, GR + 1, M1, M1 + 1))
    A("v_cndmask_b32 v4, v4, v%d, s[%d:%d]" % (GR + 2, M2, M2 + 1))
    A("v_cndmask_b32 v4, v4, v%d, s[%d:%d]" % (GR + 3, M3, M3 + 1))
    A("v_mul_f32 v5, %s, v%d" % (f32(1.0 / 448), RSUM))
    A("v_mul_f32 v6, %s, v4" % f32(1.0 / 448))
    A("v_fma_f32 v6, -v5, v5, v6")
    A("v_max_f32 v6, 0, v6")
    A("v_add_f32 v6, %s, v6" % f32(1e-5))
    A("v_rsq_f32 v32, v6")
    A("s_lshl_b32 s%d, s%d, 7" % (T0, sW))
    A("s_add_u32 s%d, s%d, %d" % (T0, T0, TBL))
    A("v_mul_f32_e64 v33, -v5, v32")
    A("v_lshl_add_u32 v3, v15, 3, s%d" % T0)
    A("s_mov_b64 exec, s[%d:%d]" % (MD, MD + 1))
    A("ds_write_b64 v3, v[32:33]"); LG.issue()
    exec_all()
    A("s_and_b32 s%d, s%d, 6" % (T1, sW))
    A("s_lshl_b32 s%d, s%d, 7" % (T2, T1))
    A("s_add_u32 s%d, s%d, %d" % (T2, T2, TBL))
    A("s_lshl_b32 s%d, s%d, 14" % (sKV, sSLOT))
    A("s_lshl_b32 s%d, s%d, 10" % (T1, T1))
    A("s_add_u32 s%d, s%d, s%d" % (sKV, sKV, T1))
    A("s_add_u32 s%d, s%d, 0x%x" % (sKV, sKV, KVB + (8192 if isv else 0)))
    A("v_add_u32 v6, s%d, v%d" % (T1, vL16))
    if isv:
        A("v_lshl_add_u32 v4, v14, 5, s%d" % T2)
    else:
        A("v_lshl_add_u32 v4, v15, 3, s%d" % T2)
    LG.wait_all()
    barrier()
    A("ds_read_b64 %s, v3" % v(ST, 2)); LG.issue()
    OUTF = 140
    if isv:
        for a in range(2):
            A("ds_read_b128 %s, v4 offset:%d" % (v(ST + 4 + 8 * a, 4), 128 * a)); LG.issue()
            A("ds_read_b128 %s, v4 offset:%d" % (v(ST + 8 + 8 * a, 4), 128 * a + 16)); LG.issue()
        LG.wait_all()
        for dt in range(2):
            for a in range(2):
                ac = AKV + (0 if a == 1 else 8) + 4 * dt
                for r in range(4):
                    A("v_mul_f32 v3, v%d, v%d" % (CSA + 4 * dt, ST + 4 + 8 * a + 2 * r + 1))
                    A("v_fma_f32 v%d, v%d, v%d, v3" % (ac + r, ac + r, ST + 4 + 8 * a + 2 * r))
                for i in range(2):
                    A("v_cvt_pk_bf16_f32 v%d, v%d, v%d" % (OUTF + 4 * dt + 2 * a + i, ac + 2 * i, ac + 2 * i + 1))
            if dt == 1:
                set_exec(0x10001000, 0x10001000)
                for i in range(4):
                    A("v_mov_b32 v%d, 0x3f803f80" % (OUTF + 4 + i))
                set_exec(0xE000E000, 0xE000E000)
                for i in range(4):
                    A("v_mov_b32 v%d, 0" % (OUTF + 4 + i))
                exec_all()
            A("buffer_store_dwordx4 %s, v%d, %s, s%d offen offset:%d sc1" % (v(OUTF + 4 * dt, 4), vL16, s(SWS, 4), sKV, dt * 1024)); VM.issue()
        for dt in range(2):
            A("ds_write_b128 v6, %s offset:%d" % (v(OUTF + 4 * dt, 4), VREG + 16384 + dt * 1024)); LG.issue()
    else:
        A("ds_read_b64 %s, v4 offset:128" % v(ST + 2, 2)); LG.issue()
        LG.wait_all()
        for a in range(2):
            for t in range(2):
                ac = AKV + 8 * a + 4 * t
                for r in range(4):
                    A("v_mul_f32 v3, v%d, v%d" % (CSA + 4 * t + r, ST + 2 * a + 1))
                    A("v_fma_f32 v%d, v%d, v%d, v3" % (ac + r, ac + r, ST + 2 * a))
                for i in range(2):
                    A("v_cvt_pk_bf16_f32 v%d, v%d, v%d" % (OUTF + 4 * a + 2 * t + i, ac + 2 * i, ac + 2 * i + 1))
            set_exec(0, 0xFFFF0000)
            A("v_mov_b32 v%d, 0\nv_mov_b32 v%d, 0" % (OUTF + 4 * a + 2, OUTF + 4 * a + 3))
            exec_all()
            A("buffer_store_dwordx4 %s, v%d, %s, s%d offen offset:%d sc1" % (v(OUTF + 4 * a, 4), vL16, s(SWS, 4), sKV, a * 1024)); VM.issue()
        for a in range(2):
            A("ds_write_b128 v6, %s offset:%d" % (v(OUTF + 4 * a, 4), 16384 + a * 1024)); LG.issue()
ST = 148
sKV = 11
CSV = 120
qs = (28 ** -0.5) * math.log2(math.e)
RQ = 34
Lv = A.label(); Lj = A.label()
A("s_bitcmp1_b32 s%d, 0" % sW)
A("s_cbranch_scc1 %s" % Lv)
st_vm = (VM.n, dict(VM.tags), VM.done); st_lg = (LG.n, dict(LG.tags), LG.done); st_ns = nstamp[0]
p1_loop(False)
A("s_branch %s" % Lj)
A.place(Lv)
VM.n, VM.tags, VM.done = st_vm[0], dict(st_vm[1]), st_vm[2]
LG.n, LG.tags, LG.done = st_lg[0], dict(st_lg[1]), st_lg[2]
nstamp[0] = st_ns
p1_loop(True)
A.place(Lj)
A("v_mul_f32 v%d, %s, v%d" % (RQ, f32(qs), ST))
A("v_mul_f32 v%d, %s, v%d" % (RQ + 1, f32(qs), ST + 1))
A("s_lshl_b32 s%d, s%d, 4" % (T0, sRB))
A("v_add_u32 v%d, s%d, v15" % (vPOLL, T0))
A("s_lshl_b32 s%d, s%d, 4" % (T3, sRB4))
set_exec(0, 0x0000ffff)
A("v_add_u32 v%d, s%d, v15" % (vPOLL, T3))
exec_all()
A("s_sub_i32 s%d, s%d, 16" % (T1, sSLOT))
A("s_max_i32 s%d, s%d, 0" % (T1, T1))
A("s_sub_i32 s%d, s%d, 32" % (T2, sSLOT))
A("s_cmp_lt_i32 s%d, 0" % T2)
A("s_cselect_b32 s%d, s%d, s%d" % (T2, T1, T2))
A("v_writelane_b32 v%d, s%d, 16" % (vPOLL, T1))
A("v_writelane_b32 v%d, s%d, 17" % (vPOLL, T2))
A("v_and_b32 v%d, 255, v%d" % (vPOLL, vPOLL))
L7 = if_wave(7)
A("v_lshlrev_b32 v3, 3, v%d" % vPOLL)
set_exec(0, 0xffff0000)
A("v_add_u32 v3, 0x800, v3")
exec_all()
A("s_mov_b32 s%d, 0x%x" % (T0, FL_HELLO))
A("buffer_load_dwordx2 %s, v3, %s, s%d offen sc1" % (v(PT, 2), s(SWS, 4), T0))
A.place(L7)
Lx = A.label()
A("s_cmp_eq_u32 s%d, 0" % sISWO)
A("s_cbranch_scc1 %s" % Lx)
repack_lds(RS1, 104, True, 178, 179)
repack_stores(104, sRDST, False)
A.place(Lx)
BIAS = 168
A("s_and_b32 s%d, s%d, 1" % (T1, sW))
A("s_lshl_b32 s%d, s%d, 4" % (T1, T1))
A("v_lshlrev_b32 v4, 2, v14")
A("v_sub_u32 v4, v15, v4")
A("v_add_u32 v4, s%d, v4" % T1)
A("v_mov_b32 v5, 0xff800000")
A("v_mov_b32 v6, 0")
items = [(BIAS + 4 * k + r, "v_cmp_gt_i32", 16 * k + r) for k in (0, 1) for r in range(4)] + \
        [(BIAS + 8 + 4 * k + r, "v_cmp_le_i32", 16 * k + r) for k in (0, 1) for r in range(4)]
for k in range(0, 16, 4):
    grp = items[k:k + 4]
    for (q, (reg, op, cst)) in enumerate(grp):
        A("%s s[%d:%d], %d, v4" % (op, MS[q], MS[q] + 1, cst))
    for (q, (reg, op, cst)) in enumerate(grp):
        A("v_cndmask_b32 v%d, v5, v6, s[%d:%d]" % (reg, MS[q], MS[q] + 1))
A("v_lshrrev_b32 v3, 1, v14")
A("v_lshlrev_b32 v3, 10, v3")
A("v_sub_u32 v3, %d, v3" % WQL)
A("v_add_u32 v8, v8, v3")
A("v_add_u32 v9, v9, v3")
A("s_and_b32 s%d, s%d, 1" % (sTT, sW))
A("s_cmp_eq_u32 s%d, 1" % sTT)
A("s_cselect_b64 s[12:13], -1, 0")
A("v_cndmask_b32 v10, v8, v9, s[12:13]")
VM.wait_all()
LG.wait_all()
barrier()
flag_stores(FL_KV)
L4 = if_wave(4)
packed_flag(FL_RP1)
A.place(L4)
stamp("main", "kv flag")
A("s_cmp_eq_u32 s%d, 0" % sHAS)
A("s_cselect_b32 s%d, 0x10000000, s%d" % (sRSRC, sRSRC))
A("s_cselect_b32 s%d, 0x%x, s%d" % (sRDST, OOB, sRDST))
rs_loads(RS1, 184, True)
L7 = if_wave(7)
A("s_setprio 2")
A.place(L7)
QW, CSQ = 104, 140
def q_read(ks):
    for f in range(3):
        d = QW + (ks % 3) * 12 + 4 * f
        A("ds_read_b64_tr_b16 %s, v%d offset:%d" % (v(d, 2), 8 + f, ks * 2048)); LG.issue()
        A("ds_read_b64_tr_b16 %s, v%d offset:%d" % (v(d + 2, 2), 8 + f, ks * 2048 + 256)); LG.issue(("q", ks, f))
q_read(0); q_read(1)
for ks in range(14):
    for f in range(3):
        d = QW + (ks % 3) * 12 + 4 * f
        LG.wait(("q", ks, f))
        if f < 2:
            mfma(ACC + 4 * f, d, XP + 4 * ks, None if ks == 0 else ACC + 4 * f)
        else:
            mfma(CSQ, ONES, d, None if ks == 0 else CSQ)
    if ks + 2 < 14:
        q_read(ks + 2)
A("s_lshl_b32 s%d, s%d, 6" % (T0, sTT))
A("s_add_u32 s%d, s%d, %d" % (T0, T0, CSB))
A("v_lshl_add_u32 v3, v15, 2, s%d" % T0)
A("ds_write_b32 v3, v%d" % CSQ); LG.issue()
LG.wait_all()
stamp("main", "q pass done")
L7 = if_wave(7)
A("v_or_b32 v36, s%d, v%d" % (sXCC, NON))
A("v_mov_b32 v37, v%d" % (NON + 1))
A("v_cmp_eq_u64 vcc, %s, v[36:37]" % v(PT, 2))
A("v_lshlrev_b32 v%d, 7, v%d" % (vPOLL, vPOLL))
A("v_mov_b32 v32, 0x%x" % FASTOFF)
A("v_cndmask_b32 v32, 0, v32, vcc")
A("v_or_b32 v%d, v%d, v32" % (vPOLL, vPOLL))
Lsk = A.label()
A("s_cmp_eq_u32 s%d, 0" % sRB)
A("s_cbranch_scc1 %s" % Lsk)
A("s_cmp_eq_u32 s%d, 1" % sRB)
A("s_cselect_b32 s%d, 1, 3" % T1)
A("s_lshl_b32 s%d, s%d, 16" % (T1, T1))
A("s_mov_b32 exec_hi, 0")
A("s_mov_b32 exec_lo, s%d" % T1)
poll_flags(FL_KV)
A.place(Lsk)
A.place(L7)
A("s_lshr_b32 s%d, s%d, 2" % (T0, sW))
A("s_and_b32 s%d, s%d, 3" % (T1, sW))
A("s_add_u32 s%d, s%d, s%d" % (T2, sRB, T0))
A("s_lshl_b32 s%d, s%d, 4" % (T3, T0))
A("s_add_u32 s%d, s%d, s%d" % (T3, T3, sSLOT))
A("s_sub_u32 s%d, s%d, 32" % (T3, T3))
A("s_lshl_b32 s%d, s%d, 14" % (T3, T3))
A("s_lshl_b32 s%d, s%d, 12" % (T4, T1))
A("s_add_u32 s%d, s%d, s%d" % (T3, T3, T4))
A("s_add_u32 s%d, s%d, 0x%x" % (T3, T3, KVB))
A("s_cmp_lt_u32 s%d, 2" % T2)
A("s_cselect_b32 s%d, 0x%x, s%d" % (T3, WS_SIZE, T3))
A("s_lshl_b32 s%d, s%d, 13" % (T4, T0))
A("s_and_b32 s%d, s%d, 1" % (T5, T1))
A("s_lshl_b32 s%d, s%d, 12" % (T5, T5))
A("s_add_u32 s%d, s%d, s%d" % (T4, T4, T5))
A("s_cmp_ge_u32 s%d, 2" % T1)
A("s_cselect_b32 s%d, %d, 0" % (T5, VREG))
A("s_add_u32 m0, s%d, s%d" % (T4, T5))
barrier()
for i in range(4):
    A("buffer_load_dwordx4 v%d, %s, s%d offen offset:%d sc1 lds" % (vL16, s(SWS, 4), T3, i * 1024)); VM.issue(("kvdma", i))
A("s_setprio 0")
stamp("main", "A")
A("v_lshlrev_b32 v3, 4, v14")
A("v_add_u32 v3, %d, v3" % CSB)
for t in range(2):
    A("ds_read_b128 %s, v3 offset:%d" % (v(CSV + 4 * t, 4), 64 * t)); LG.issue()
LG.wait_all()
for t in (0, 1):
    for r in range(4):
        A("v_mul_f32 v%d, v%d, v%d" % (CSV + 4 * t + r, CSV + 4 * t + r, RQ + 1))
        A("v_fma_f32 v%d, v%d, v%d, v%d" % (ACC + 4 * t + r, ACC + 4 * t + r, RQ, CSV + 4 * t + r))
for i in range(4):
    A("v_cvt_pk_bf16_f32 v%d, v%d, v%d" % (QF + i, ACC + 2 * i, ACC + 2 * i + 1))
set_exec(0, 0xFFFF0000)
for r in (QF + 2, QF + 3):
    A("v_mov_b32 v%d, 0" % r)
exec_all()
for i in range(16):
    A("v_mov_b32 v%d, v%d" % (240 + i, BIAS + i))
BIAS = 240
VM.wait(("rs", 3))
Lx = A.label()
A("s_cmp_eq_u32 s%d, 0" % sHAS)
A("s_cbranch_scc1 %s" % Lx)
repack_lds(RS1, 184, False, 178, 179)
A.place(Lx)
repack_stores(184, sRDST, True)
L7 = if_wave(7)
rp_publish(FL_RP1, 40, 0)
A.place(L7)
A("s_lshr_b32 s%d, s%d, 1" % (T0, sW))
A("s_lshl_b32 s%d, s%d, 11" % (T0, T0))
A("v_add_u32 v3, s%d, v%d" % (T0, vL16))
VM.wait(("kvdma", 3))
barrier()
stamp("main", "B")
A("ds_read_b32 v12, v11"); LG.issue("rpok")

def rot_addr(dst, sbase, kind, slot):
    th, k, wrap = {"o": (sTHo, slot, 16384), "g": (sTHg, slot >> 1, 28672), "d": (sTHd, slot, 57344)}[kind]
    A("s_cmp_gt_u32 s%d, %d" % (th, k))
    A("s_cselect_b32 s%d, 0, %d" % (dst, wrap))
    A("s_sub_u32 s%d, s%d, s%d" % (dst, sbase, dst))
def wload(reg, kind, sbase, frag, tag=None):
    rot_addr(T5, sbase, kind, frag)
    if frag >= 4:
        A("s_add_u32 s%d, s%d, %d" % (T5, T5, (frag // 4) * 4096))
    A("buffer_load_dwordx4 %s, v%d, %s, s%d offen offset:%d sc1" % (v(reg, 4), vL16, s(SWS, 4), T5, (frag % 4) * 1024)); VM.issue(tag)
WOR, WGR, CS4, FR = 176, 64, 240, 32
ACP = [176, 208]
sWE, sWE2 = 20, 3
NE = 0
early = [(WOR + 4 * hd, "o", sWE, hd) for hd in range(16)]
def early_some(n):
    for _ in range(n):
        if early:
            wload(*early.pop(0))

SS, OO, RS2 = 104, 32, 64
WIN = [40, 44, 48, 52, 56, 60, 88, 92, 96, 100]
NWIN = len(WIN)
seq = [("k", i) for i in range(18)] + [("v", i) for i in range(18)]
def kv_read(n):
    kind, i = seq[n]
    off = i * 1024 + (VREG if kind == "v" else 0)
    A("ds_read_b128 %s, v3 offset:%d" % (v(WIN[n % NWIN], 4), off)); LG.issue((kind, i))
for n in range(NWIN):
    kv_read(n)
LG.wait("rpok")
A("v_readfirstlane_b32 s%d, v12" % sRPOK)
A("s_cmp_lg_u32 s%d, 7" % sW)
A("s_cselect_b32 s%d, s%d, 0" % (T0, sRPOK))
A("s_cmp_lg_u32 s%d, 0" % T0)
A("s_cselect_b32 s%d, s%d, 0x%x" % (sWE, sWO, OOB))
A("s_cselect_b32 s%d, s%d, 0x%x" % (sWE2, sWGU, OOB))
for i in range(18):
    LG.wait(("k", i))
    cb = {0: BIAS, 1: BIAS + 4, 16: BIAS + 8, 17: BIAS + 12}.get(i)
    mfma(SS + 4 * i, WIN[i % NWIN], QF, cb)
    kv_read(i + NWIN)
stamp("p2", "qk issued")
Lneg = A.label()
A("s_cmp_ge_u32 s%d, 2" % sRB)
A("s_cbranch_scc1 %s" % Lneg)
A("s_lshl_b32 s%d, s%d, 3" % (T0, sRB))
A("s_sub_u32 s%d, 16, s%d" % (T0, T0))
A("s_and_b32 s%d, s%d, 6" % (T1, sW))
A("s_sub_u32 s%d, s%d, s%d" % (T0, T0, T1))
for sl in range(16):
    A("s_cmp_gt_i32 s%d, %d" % (T0, sl))
    A("s_cbranch_scc0 %s" % Lneg)
    for r in range(4):
        A("v_mov_b32 v%d, v5" % (SS + 4 * sl + r))
A.place(Lneg)
A("v_max3_f32 v6, v%d, v%d, v%d" % (SS, SS + 1, SS + 2))
A("v_max3_f32 v7, v%d, v%d, v%d" % (SS + 3, SS + 4, SS + 5))
for i in range(6, 72, 4):
    A("v_max3_f32 v6, v6, v%d, v%d" % (SS + i, SS + i + 1))
    if i + 3 < 72:
        A("v_max3_f32 v7, v7, v%d, v%d" % (SS + i + 2, SS + i + 3))
A("v_max_f32 v6, v6, v7")
A("v_mov_b32 v7, v6")
A("v_permlane32_swap_b32 v6, v7")
A("v_max_f32 v6, v6, v7")
A("v_mov_b32 v7, v6")
A("v_permlane16_swap_b32 v6, v7")
A("v_max_f32 v6, v6, v7")
stamp("p2", "max done")
VM.wait_all()
arrive(4, 7, lambda: (A("s_lshl_b32 s%d, s%d, 3" % (T0, sSLOT)), A("s_add_u32 s%d, s%d, 0x%x" % (T0, T0, FL_RP2)), store_non(T0, " sc1")))
A("v_mul_u32_u24 v12, 896, v15")
A("v_lshl_add_u32 v12, v14, 3, v12")
A("s_mul_i32 s%d, s%d, %d" % (T0, sMT3, 16 * 896))
A("s_lshl_b32 s%d, s%d, 5" % (T1, sNT))
A("s_add_u32 s%d, s%d, s%d" % (T0, T0, T1))
A("buffer_load_dwordx2 %s, v12, %s, s%d offen" % (v(XRES, 2), s(SX, 4), T0)); VM.issue()
A("s_add_u32 s%d, s%d, %d" % (T0, T0, 64 * 896))
A("buffer_load_dwordx2 %s, v12, %s, s%d offen" % (v(XRES + 2, 2), s(SX, 4), T0)); VM.issue()
for p in range(9):
    b = SS + 8 * p
    for i in range(8):
        A("v_sub_f32 v%d, v%d, v6" % (b + i, b + i))
    for i in range(8):
        A("v_exp_f32 v%d, v%d" % (b + i, b + i))
        if i in (2, 6) and p < 8:
            early_some(1)
    for i in range(4):
        A("v_cvt_pk_bf16_f32 v%d, v%d, v%d" % (b + i, b + 2 * i, b + 2 * i + 1))
    for dt in range(2):
        n = 18 + 2 * p + dt
        LG.wait(("v", 2 * p + dt))
        mfma(OO + 4 * dt, WIN[n % NWIN], b, None if p == 0 else OO + 4 * dt)
        if n + NWIN < 36:
            kv_read(n + NWIN)
assert not early
stamp("p2", "pv issued")
A("s_lshl_b32 s%d, s%d, 3" % (T0, sRB))
A("s_add_u32 s%d, s%d, s%d" % (T0, T0, sW))
A("s_lshl_b32 s%d, s%d, 4" % (T0, T0))
A("s_add_u32 s%d, s%d, s%d" % (T0, T0, sJ))
A("s_lshl_b32 s%d, s%d, 10" % (T0, T0))
A("s_add_u32 s%d, s%d, 0x%x" % (T0, T0, OFB))
A("v_mov_b32 v6, v%d" % (OO + 4))
A("v_mov_b32 v7, v6")
A("v_permlane32_swap_b32 v6, v7")
A("v_mov_b32 v6, v7")
A("v_permlane16_swap_b32 v7, v6")
A("v_rcp_f32 v6, v6")
for i in range(8):
    A("v_mul_f32 v%d, v%d, v6" % (OO + i, OO + i))
for i in range(4):
    A("v_cvt_pk_bf16_f32 v%d, v%d, v%d" % (40 + i, OO + 2 * i, OO + 2 * i + 1))
A("buffer_store_dwordx4 v[40:43], v%d, %s, s%d offen sc1" % (vL16, s(SWS, 4), T0)); VM.issue("ostore")
stamp("p2", "o store issued")
L7 = if_wave(7)
rp_block(FL_RP1, 44)
rp_publish(FL_RP2, 44, 5)
A.place(L7)
VM.wait_all()
stamp("p2", "o drained")
barrier()
flag_stores(FL_O)
stamp("main", "C")
common_stamps = nstamp[0]
Lw7 = A.label("L_w7path")
A("s_cmp_eq_u32 s%d, 7" % sW)
A("s_cbranch_scc1 %s" % Lw7)

def o_dma_setup():
    A("s_lshr_b32 s%d, s%d, 2" % (T2, sW))
    A("s_lshl_b32 s%d, s%d, 2" % (T2, T2))
    A("s_add_u32 s%d, s%d, s%d" % (T0, sMT3, T2))
    A("s_lshl_b32 s%d, s%d, 14" % (T0, T0))
    A("s_add_u32 s%d, s%d, 0x%x" % (T0, T0, OFB))
    A("s_and_b32 s%d, s%d, 3" % (T2, sW))
    A("s_lshl_b32 s%d, s%d, 12" % (T2, T2))
    A("s_add_u32 s%d, s%d, s%d" % (T2, T2, sROo))
    A("s_lshl_b32 s%d, s%d, 12" % (T1, sW))
    A("s_and_b32 s%d, s%d, 0x3fff" % (T3, T2))
    A("s_add_u32 s%d, s%d, s%d" % (T3, T3, T0))
    A("s_add_u32 s%d, s%d, 2048" % (T4, T2))
    A("s_and_b32 s%d, s%d, 0x3fff" % (T4, T4))
    A("s_add_u32 s%d, s%d, s%d" % (T4, T4, T0))
    A("s_add_u32 m0, s%d, %d" % (T1, OLDS))
def o_dma_issue():
    for i in range(2):
        A("buffer_load_dwordx4 v%d, %s, s%d offen offset:%d sc1 lds" % (vL16, s(SWS, 4), T3, i * 1024)); VM.issue(("odma", i))
    A("s_add_u32 m0, s%d, %d" % (T1, OLDS + 2048))
    for i in range(2):
        A("buffer_load_dwordx4 v%d, %s, s%d offen offset:%d sc1 lds" % (vL16, s(SWS, 4), T4, i * 1024)); VM.issue(("odma", 2 + i))
def h_dma():
    A("s_mul_i32 s%d, s%d, 14336" % (T1, sW))
    A("s_mul_i32 s%d, s%d, %d" % (T0, sRB4, 8 * 14336))
    A("s_add_u32 s%d, s%d, s%d" % (T0, T0, T1))
    A("s_add_u32 s%d, s%d, s%d" % (T0, T0, sROg))
    A("s_add_u32 s%d, s%d, 0x%x" % (T0, T0, HFB))
    for q in range(14):
        A("s_add_u32 m0, s%d, %d" % (T1, q * 1024))
        A("s_cmp_gt_u32 s%d, %d" % (sTHg, q))
        A("s_cselect_b32 s%d, 0, 14336" % T2)
        A("s_sub_u32 s%d, s%d, s%d" % (T2, T0, T2))
        A("s_add_u32 s%d, s%d, %d" % (T2, T2, q * 1024))
        A("buffer_load_dwordx4 v%d, %s, s%d offen sc1 lds" % (vL16, s(SWS, 4), T2)); VM.issue(("hdma", q))

Lle = A.label()
A("s_cmp_lg_u32 s%d, 0" % sRPOK)
A("s_cbranch_scc1 %s" % Lle)
for hd in range(16):
    wload(WOR + 4 * hd, "o", sWO, hd)
for fr in range(NE):
    wload(WGR + 4 * fr, "g", sWGU, fr)
A.place(Lle)
N1 = int(opt("n1", "8")); N2 = int(opt("n2", "14")); N3 = int(opt("n3", "20"))
sOK1, sOK2 = 68, 69
A("ds_read_b32 v12, v11 offset:20")
A("s_waitcnt lgkmcnt(0)")
A("v_readfirstlane_b32 s%d, v12" % sOK1)
Lq = A.label()
A("s_cmp_eq_u32 s%d, 0" % sOK1)
A("s_cbranch_scc1 %s" % Lq)
for fr in range(N1):
    wload(WGR + 4 * fr, "g", sWGU, fr)
A.place(Lq)
A("v_and_b32 v5, 1, v14")
A("v_lshrrev_b32 v6, 1, v14")
A("v_lshlrev_b32 v7, 4, v15")
A("v_lshl_add_u32 v7, v6, 8, v7")
A("v_mul_u32_u24 v8, 57344, v5")
A("v_add_u32 v8, v8, v7")
A("v_lshl_add_u32 v10, v5, 6, v15")
A("v_mul_u32_u24 v10, 896, v10")
A("v_lshl_add_u32 v10, v6, 4, v10")
A("v_add_u32 v3, %d, v%d" % (OLDS, vL16))
A("v_lshlrev_b32 v9, 4, v15")
A("v_add_u32 v9, %d, v9" % TBL)
o_dma_setup()
barrier()
o_dma_issue()
stamp("w", "D")
VM.wait(("odma", 3))
barrier()
stamp("w", "E")
A("ds_read_b32 v12, v11 offset:20"); LG.issue("rpok2")
AC3 = 240
def p3_read(hd):
    for a in range(2):
        A("ds_read_b128 %s, v3 offset:%d" % (v(FR + (hd % 4) * 8 + 4 * a, 4), a * 16384 + hd * 1024)); LG.issue(("o", hd, a))
for hd in range(4):
    p3_read(hd)
LG.wait("rpok2")
A("v_readfirstlane_b32 s%d, v12" % sOK2)
A("s_cmp_lg_u32 s%d, 0" % sOK2)
A("s_cselect_b32 s%d, s%d, 0x%x" % (sWE, sWGU, OOB))
for hd in range(16):
    for a in range(2):
        LG.wait(("o", hd, a))
        mfma(AC3 + 4 * a, WOR + 4 * hd, FR + (hd % 4) * 8 + 4 * a, None if hd == 0 else AC3 + 4 * a)
    if hd + 4 < 16:
        p3_read(hd + 4)
    if hd < N2 - N1:
        wload(WGR + 4 * (N1 + hd), "g", sWE, N1 + hd)
for a in range(2):
    for i in range(2):
        A("v_lshlrev_b32 v%d, 16, v%d" % (FR + 4 * a + 2 * i, XRES + 2 * a + i))
        A("v_and_b32 v%d, 0xffff0000, v%d" % (FR + 4 * a + 2 * i + 1, XRES + 2 * a + i))
A("s_mul_i32 s%d, s%d, 14336" % (T0, sMT3))
A("s_lshl_b32 s%d, s%d, 9" % (T1, sNT))
A("s_add_u32 s%d, s%d, s%d" % (T0, T0, T1))
A("s_add_u32 s%d, s%d, 0x%x" % (T0, T0, HFB))
for i in range(8):
    A("v_add_f32 v%d, v%d, v%d" % (FR + i, FR + i, AC3 + i))
HPK = XRES
for i in range(4):
    A("v_cvt_pk_bf16_f32 v%d, v%d, v%d" % (FR + 8 + i, FR + 2 * i, FR + 2 * i + 1))
for i in range(4):
    A("v_mov_b32 v%d, v%d" % (HPK + i, FR + 8 + i))
A("v_permlane16_swap_b32 v%d, v%d" % (FR + 8, FR + 10))
A("v_permlane16_swap_b32 v%d, v%d" % (FR + 9, FR + 11))
A("buffer_store_dwordx4 %s, v8, %s, s%d offen sc1" % (v(FR + 8, 4), s(SWS, 4), T0)); VM.issue()
stamp("w", "h store issued")
VM.wait_all()
stamp("w", "h drained")
barrier()
flag_stores(FL_H)
for (ok, lo, hi) in ((sOK1, 0, N1), (sOK2, N1, N2)):
    Lq = A.label()
    A("s_cmp_lg_u32 s%d, 0" % ok)
    A("s_cbranch_scc1 %s" % Lq)
    for fr in range(lo, hi):
        wload(WGR + 4 * fr, "g", sWGU, fr)
    A.place(Lq)
for fr in range(N2):
    VM.tags[("wgu", fr)] = VM.n
for fr in range(N2, N3):
    wload(WGR + 4 * fr, "g", sWGU, fr, ("wgu", fr))
def colsum(fr):
    ks, gu = fr >> 1, fr & 1
    VM.wait(("wgu", fr))
    mfma(CS4 + 4 * gu, WGR + 4 * fr, ONES, None if ks == 0 else CS4 + 4 * gu)
for fr in range(N2):
    colsum(fr)
stamp("w", "pre F")
barrier()
stamp("w", "F")
h_dma()
for fr in range(N2, N3):
    colsum(fr)
N2 = N3
STEPS = [(ps, ks) for ks in range(7) for ps in range(2)] + [(0, ks) for ks in range(7, 14)] + [(1, ks) for ks in range(7, 14)]
def p4_read(t, m, base, nslot):
    ps, ks = STEPS[t]
    va = vL16 if ps == 0 else vL16B
    A("ds_read_b128 %s, v%d offset:%d" % (v(base + (t % nslot) * 16 + 4 * m, 4), va, m * 14336 + ks * 1024)); LG.issue(("h", t, m))
P4BAR = {0: 0, 2: 2, 6: 6, 14: 13}
def p4_gate(t):
    if t in P4BAR:
        VM.wait(("hdma", P4BAR[t]))
        barrier()
sACT = 20
A("s_mul_i32 s%d, s%d, %d" % (sACT, sRB4, 8 * 57344))
A("s_lshl_b32 s%d, s%d, 9" % (T1, sFT))
A("s_add_u32 s%d, s%d, s%d" % (sACT, sACT, T1))
A("s_add_u32 s%d, s%d, 0x%x" % (sACT, sACT, ACTB))
TM = 248
STB = [28, 4]
def stats_wait(val):
    Lp = A.label(); Ld = A.label()
    LG.wait_all()
    A("s_mov_b32 s%d, 0" % sSPIN)
    A.place(Lp)
    A("ds_read_b32 v12, v11 offset:4")
    A("s_add_u32 s%d, s%d, 1" % (sSPIN, sSPIN))
    A("s_cmp_gt_u32 s%d, 0x100000" % sSPIN)
    A("s_waitcnt lgkmcnt(0)")
    A("s_cbranch_scc1 %s" % Ld)
    A("v_cmp_gt_u32 vcc, %d, v12" % val)
    A("s_cbranch_vccnz %s" % Lp)
    A.place(Ld)
def epilogue(ps):
    def rd(m):
        A("ds_read_b128 %s, v9 offset:%d" % (v(STB[m % 2], 4), 256 * (4 * ps + m))); LG.issue(("st", ps, m))
    rd(0); rd(1)
    for mp in range(2):
        pk = 252 if mp == 0 else 16
        for a in range(2):
            m = 2 * mp + a
            st = STB[m % 2]
            g0 = ACP[ps] + 8 * m
            LG.wait(("st", ps, m))
            for r in range(8):
                A("v_fmac_f32 v%d, v%d, v%d" % (g0 + r, CS4 + r, st))
            for r in range(4):
                A("v_mul_f32 v%d, v%d, v%d" % (TM + r, g0 + r, st + 1))
            for r in range(4):
                A("v_exp_f32 v%d, v%d" % (TM + r, TM + r))
            for r in range(4):
                A("v_mul_f32 v%d, v%d, v%d" % (g0 + r, g0 + r, g0 + 4 + r))
            for r in range(4):
                A("v_fma_f32 v%d, v%d, v%d, v%d" % (TM + r, TM + r, st + 2, st + 2))
            if m + 2 < 4:
                rd(m + 2)
            for r in range(4):
                A("v_rcp_f32 v%d, v%d" % (TM + r, TM + r))
            for r in range(4):
                A("v_mul_f32 v%d, v%d, v%d" % (g0 + r, g0 + r, TM + r))
            for i in range(2):
                A("v_cvt_pk_bf16_f32 v%d, v%d, v%d" % (pk + 2 * a + i, g0 + 2 * i, g0 + 2 * i + 1))
        A("s_add_u32 s%d, s%d, %d" % (T0, sACT, (4 * ps + 2 * mp) * 57344))
        A("v_permlane16_swap_b32 v%d, v%d" % (pk, pk + 2))
        A("v_permlane16_swap_b32 v%d, v%d" % (pk + 1, pk + 3))
        A("buffer_store_dwordx4 %s, v8, %s, s%d offen sc1" % (v(pk, 4), s(SWS, 4), T0)); VM.issue()
def wdreg(ks):
    return 64 + 4 * ks if ks < 48 else 56 + 4 * (ks - 48)
sWDL = 21
A("s_mul_i32 s%d, s%d, 6144" % (sWDL, sW))
A("s_add_u32 s%d, s%d, %d" % (sWDL, sWDL, WDL))
def wd_lds(q):
    fr = 50 + q
    rot_addr(T5, sWD, "d", fr)
    A("s_add_u32 m0, s%d, %d" % (sWDL, q * 1024))
    A("s_add_u32 s%d, s%d, %d" % (T5, T5, fr * 1024))
    A("buffer_load_dwordx4 v%d, %s, s%d offen sc1 lds" % (vL16, s(SWS, 4), T5)); VM.issue(("wd", fr))
ldq = list(range(6))
p4_gate(0)
stamp("w2", "chunk0")
for t in range(2):
    for m in range(4):
        p4_read(t, m, FR, 2)
gq = list(range(N2, 28))
wdq = []
DRAIN_AT = int(opt("drain", "24"))
WDRATE = int(opt("wdrate", "2"))
cs_pending = list(range(N2, 28))
for t in range(28):
    ps, ks = STEPS[t]
    p4_gate(t + 2)
    if t == 21:
        stamp("w2", "A mfma end")
        stats_wait(1)
        epilogue(0)
        stamp("w2", "epi A done")
    if t == DRAIN_AT:
        VM.wait_all()
        arrive(2, 6, both_flags(FL_ACT))
        stamp("w2", "A flagged")
        for q in range(8):
            wdq.append((ACP[0] + 4 * q, 28 + q))
    for gu in range(2):
        if 2 * ks + gu >= N2:
            VM.wait(("wgu", 2 * ks + gu))
    if ps == 0 and ks >= 7:
        for gu in range(2):
            if 2 * ks + gu in cs_pending:
                cs_pending.remove(2 * ks + gu)
                colsum(2 * ks + gu)
    nld = 0
    for m in range(4):
        LG.wait(("h", t, m))
        for gu in range(2):
            ac = ACP[ps] + 8 * m + 4 * gu
            mfma(ac, WGR + 8 * ks + 4 * gu, FR + (t % 2) * 16 + 4 * m, None if ks == 0 else ac)
        if t + 2 < 28:
            p4_read(t + 2, m, FR, 2)
        paused = 20 <= t < DRAIN_AT
        if t >= 2 and nld < WDRATE and m % 2 == 0 and not paused:
            if gq:
                fr = gq.pop(0)
                wload(WGR + 4 * fr, "g", sWGU, fr, ("wgu", fr)); nld += 1
            elif ldq and not wdq:
                wd_lds(ldq.pop(0)); nld += 1
            elif wdq:
                wdq.sort(key=lambda e: e[1])
                reg, fr = wdq.pop(0)
                wload(reg, "d", sWD, fr, ("wd", fr)); nld += 1
    if ps == 1:
        for gu in range(2):
            wdq.append((WGR + 8 * ks + 4 * gu, 2 * ks + gu))
assert not cs_pending and not gq and not ldq
stamp("w2", "p4 loop end")
stats_wait(2)
epilogue(1)
stamp("w2", "act stores issued")
VM.wait_all()
arrive(3, 6, both_flags(FL_ACTB))
stamp("w2", "B flagged")
wdq += [(wdreg(ks), ks) for ks in range(36, 50)]
wdq.sort(key=lambda e: e[1])
NPRE = int(opt("npre", "8"))
for (reg, fr) in wdq[:NPRE]:
    wload(reg, "d", sWD, fr, ("wd", fr))
wdq = wdq[NPRE:]
barrier()
stamp("w2", "X1")
AC5 = 48
NB5 = 4
late = [fr for (_, fr) in wdq]
order5 = list(range(50, 56)) + [k for k in range(50) if k not in late] + late
orderA = order5
orderB = order5
steps = [(0, ks) for ks in orderA] + [(1, ks) for ks in orderB]
WLB = [16, 28, 4]
A("v_add_u32 v9, s%d, v%d" % (sWDL, vL16))
def p5_read(n):
    a, ks = steps[n]
    if ks >= 50 and (n % 56) < 3 or False:
        pass
    A("ds_read_b128 %s, v%d offset:%d" % (v(FR + (n % NB5) * 4, 4), vL16 if a == 0 else vL16B, ks * 1024)); LG.issue(("a", n))
def wl_read(n):
    a, ks = steps[n]
    A("ds_read_b128 %s, v9 offset:%d" % (v(WLB[n % 56 % 3], 4), (ks - 50) * 1024)); LG.issue(("wl", n))
def p5_gate(n):
    if n >= 56 and (n - 56) % 14 == 0:
        barrier()
        if n == 56:
            stamp("w2", "X2")
def p5_start(n0):
    for q in range(3):
        wl_read(n0 + q)
    for q in range(n0, n0 + NB5):
        p5_gate(q)
        p5_read(q)
p5_start(0)
for n in range(112):
    a, ks = steps[n]
    if ks >= 50:
        LG.wait(("wl", n))
        wreg = WLB[n % 56 % 3]
    else:
        VM.wait(("wd", ks))
        wreg = wdreg(ks)
    LG.wait(("a", n))
    mfma(AC5 + 4 * a, wreg, FR + (n % NB5) * 4, None if n in (0, 56) else AC5 + 4 * a)
    if ks >= 50 and n % 56 + 3 < 6:
        wl_read(n + 3)
    if a == 0 and wdq:
        reg, fr = wdq.pop(0)
        wload(reg, "d", sWD, fr, ("wd", fr))
    nn = n + NB5
    if nn < 112 and (nn < 56 or n >= 56):
        p5_gate(nn)
        p5_read(nn)
    if n == 55:
        stamp("w2", "P5A end")
        p5_start(56)
for a in range(2):
    for i in range(2):
        A("v_lshlrev_b32 v%d, 16, v%d" % (FR + 4 * a + 2 * i, HPK + 2 * a + i))
        A("v_and_b32 v%d, 0xffff0000, v%d" % (FR + 4 * a + 2 * i + 1, HPK + 2 * a + i))
A("s_mul_i32 s%d, s%d, %d" % (T0, sMT3, 16 * 896))
A("s_lshl_b32 s%d, s%d, 5" % (T1, sNT))
A("s_add_u32 s%d, s%d, s%d" % (T0, T0, T1))
for i in range(8):
    A("v_add_f32 v%d, v%d, v%d" % (FR + i, FR + i, AC5 + i))
for i in range(4):
    A("v_cvt_pk_bf16_f32 v%d, v%d, v%d" % (FR + 8 + i, FR + 2 * i, FR + 2 * i + 1))
A("v_permlane16_swap_b32 v%d, v%d" % (FR + 8, FR + 10))
A("v_permlane16_swap_b32 v%d, v%d" % (FR + 9, FR + 11))
A("buffer_store_dwordx4 %s, v10, %s, s%d offen" % (v(FR + 8, 4), s(SOUT, 4), T0)); VM.issue()
stamp("w2", "out store issued")
def dump_stamps(slot):
    if STAMPS:
        A("s_lshl_b32 s%d, s2, 7" % T0)
        A("s_add_u32 s%d, s%d, 0x%x" % (T0, T0, STAMP_OFF + 64 * slot))
        for i in range(16):
            A("v_mov_b32 v%d, s%d" % (64 + i, sSTAMP + i))
        A("s_mov_b64 exec, 1")
        for q in range(4):
            A("buffer_store_dwordx4 %s, v%d, %s, s%d offen offset:%d" % (v(64 + 4 * q, 4), vL16, s(SWS, 4), T0, 16 * q))
if STAMPS:
    A("s_cmp_lg_u32 s%d, %d" % (sW, int(opt("wave", "0"))))
    A("s_cbranch_scc1 L_end")
    dump_stamps(1)
A("s_branch L_end")
nstamp[0] = common_stamps
sys.stderr.write("--- wave 7 path\n")

A.place(Lw7)
VM.done = VM.n - 1; LG.done = LG.n - 1
A("s_setprio 3")
poll_team(FL_O)
stamp("main", "o flags")
o_dma_setup()
barrier()
o_dma_issue()
Lq = A.label()
A("s_cmp_lg_u32 s%d, 0" % sRPOK)
A("s_cbranch_scc1 %s" % Lq)
rp_publish(FL_RP2, 40, 5)
A.place(Lq)
VM.wait_all()
barrier()
stamp("main", "E")
rp_block(FL_RP2, 40)
for (r, lo, hi) in ((M1, 0x22222222, 0x22222222), (M2, 0x44444444, 0x44444444), (M3, 0x88888888, 0x88888888)):
    A("s_mov_b32 s%d, 0x%x\ns_mov_b32 s%d, 0x%x" % (r, lo, r + 1, hi))
A("v_lshlrev_b32 v9, 4, v15")
A("v_add_u32 v9, %d, v9" % TBL)
barrier()
stamp("main", "F0")
poll_team(FL_H)
stamp("main", "h flags")
barrier()
h_dma()
SG, SR, F7, NS7 = 64, 96, 160, 3
def finalize(ps):
    for m in range(4):
        g = SG + 16 * ps + 4 * m
        o = 128 + 4 * m
        A("v_cndmask_b32 v4, v%d, v%d, s[%d:%d]" % (g, g + 1, M1, M1 + 1))
        A("v_cndmask_b32 v4, v4, v%d, s[%d:%d]" % (g + 2, M2, M2 + 1))
        A("v_cndmask_b32 v4, v4, v%d, s[%d:%d]" % (g + 3, M3, M3 + 1))
        A("v_mul_f32 v%d, %s, v%d" % (o, f32(-1.0 / 448), SR + 16 * ps + 4 * m))
        A("v_mul_f32 v4, %s, v4" % f32(1.0 / 448))
        A("v_fma_f32 v4, -v%d, v%d, v4" % (o, o))
        A("v_max_f32 v4, 0, v4")
        A("v_add_f32 v%d, %s, v4" % (o + 2, f32(1e-5)))
        A("v_rsq_f32 v4, v%d" % (o + 2))
        A("v_mul_f32 v%d, %s, v4" % (o + 1, f32(-math.log2(math.e))))
        A("v_mov_b32 v%d, 0" % (o + 3))
    A("s_mov_b64 exec, s[%d:%d]" % (MD, MD + 1))
    for m in range(4):
        A("ds_write_b128 v9, %s offset:%d" % (v(128 + 4 * m, 4), 256 * (4 * ps + m))); LG.issue()
    exec_all()
    A("v_mov_b32 v4, %d" % (ps + 1))
    LG.wait_all()
    A("ds_write_b32 v11, v4 offset:4"); LG.issue()
issued = 0
def w7_fill(upto):
    global issued
    while issued <= min(upto, 27):
        p4_gate(issued)
        for m in range(4):
            p4_read(issued, m, F7, NS7)
        issued += 1
w7_fill(1)
for t in range(28):
    ps, ks = STEPS[t]
    for m in range(4):
        LG.wait(("h", t, m))
        fr = F7 + (t % NS7) * 16 + 4 * m
        g, r = SG + 16 * ps + 4 * m, SR + 16 * ps + 4 * m
        mfma(g, fr, fr, None if ks == 0 else g)
        mfma(r, ONES, fr, None if ks == 0 else r)
        if m == 0:
            w7_fill(t + 2)
    if ks == 13:
        finalize(ps)
LG.wait_all()
stamp("main", "stats done")
def act_dma(half, order):
    A("s_add_u32 s%d, s%d, %d" % (T0, sMT3, 4 * half))
    A("s_mul_i32 s%d, s%d, 57344" % (T0, T0))
    A("s_add_u32 s%d, s%d, s%d" % (T0, T0, sROd))
    A("s_add_u32 s%d, s%d, 0x%x" % (T0, T0, ACTB))
    b0 = None
    for ks in order:
        if b0 is None or not (b0 <= ks < b0 + 4 and ks // 7 == b0 // 7):
            b0 = ks
            A("s_mov_b32 m0, %d" % (half * 57344 + b0 * 1024))
            rot_addr(T2, T0, "d", ks)
            A("s_add_u32 s%d, s%d, %d" % (T2, T2, b0 * 1024))
        A("buffer_load_dwordx4 v%d, %s, s%d offen offset:%d sc1 lds" % (vL16, s(SWS, 4), T2, (ks - b0) * 1024)); VM.issue(("adma", half, ks))
poll_team(FL_ACT)
Lp = A.label(); Ld = A.label()
A("s_mov_b32 s%d, 0" % sSPIN)
A.place(Lp)
A("ds_read_b32 v12, v11 offset:8")
A("s_add_u32 s%d, s%d, 1" % (sSPIN, sSPIN))
A("s_cmp_gt_u32 s%d, 0x100000" % sSPIN)
A("s_waitcnt lgkmcnt(0)")
A("s_cbranch_scc1 %s" % Ld)
A("v_cmp_gt_u32 vcc, 7, v12")
A("s_cbranch_vccnz %s" % Lp)
A.place(Ld)
stamp("main", "actA flags")
act_dma(0, orderA)
VM.wait_all()
stamp("main", "actA landed")
barrier()
poll_team(FL_ACTB)
stamp("main", "actB flags")
for q in range(4):
    act_dma(1, orderB[14 * q: 14 * q + 14])
    if q >= 1:
        VM.wait(("adma", 1, orderB[14 * q - 1]))
        barrier()
VM.wait_all()
barrier()
stamp("main", "last chunk")
dump_stamps(0)
A.place("L_end")
A("s_endpgm")
A.raw("L_code_end:")
A.raw('.section .rodata,"a"\n.p2align 6\n.amdhsa_kernel %s_kernel' % NAME)
A.raw("""  .amdhsa_next_free_vgpr 256
  .amdhsa_next_free_sgpr 102
  .amdhsa_accum_offset 256
  .amdhsa_group_segment_fixed_size 0
  .amdhsa_kernarg_size 80
  .amdhsa_user_sgpr_count 2
  .amdhsa_user_sgpr_kernarg_segment_ptr 1
  .amdhsa_system_sgpr_workgroup_id_x 1
.end_amdhsa_kernel""")
out = [a for a in sys.argv[1:] if not a.startswith("--")]
txt = A.text()
if out:
    open(out[0], "w").write(txt)
else:
    sys.stdout.write(txt)
sys.stderr.write("nops inserted: %d\n" % (A.nops_inserted))
```
